```python
import torch

def _softmax(x, axis=-1):
    return torch.softmax(x, dim=axis)
def _gelu(x):
    return torch.nn.functional.gelu(x, approximate="tanh")
def _silu(x):
    return torch.nn.functional.silu(x)
def _sigmoid(x):
    return torch.sigmoid(x)
def _layernorm(x, axis=-1, eps=1e-5):
    m = x.mean(dim=axis, keepdim=True)
    v = x.var(dim=axis, keepdim=True, unbiased=False)
    return (x - m) / torch.sqrt(v + eps)
def _scatter_add(tgt, idx, src, axis=0):
    return tgt.clone().index_add_(axis, idx, src)
def _segment_sum(src, seg, n):
    out = torch.zeros((n,) + src.shape[1:], dtype=src.dtype)
    return out.index_add_(0, seg, src)
def _pad(x, pw):
    flat = tuple(v for pair in reversed(pw) for v in pair)
    return torch.nn.functional.pad(x, flat)

kernel_name = 'standalone__linear_kernel_rfa__decode'

def setup_inputs():

    _w = (lambda a: (lambda t: t.to(torch.bfloat16) if t.is_floating_point() else t)(torch.as_tensor(a)))
    B, H, Sq, Sk, D, M = 1, 32, 1, 32768, 128, 16
    return {
        "q": _w((lambda *s: torch.randn(*s, dtype=torch.bfloat16) * 0.4)(B, H, Sq, D)),
        "k": _w((lambda *s: torch.randn(*s, dtype=torch.bfloat16) * 1.6)(B, H, Sk, D)),
        "v": _w((lambda *s: torch.randn(*s, dtype=torch.bfloat16) * 1.6)(B, H, Sk, D)),
        "omega": _w((lambda *s: torch.randn(*s, dtype=torch.bfloat16) * 1.6)(M, D)),
    }

def reference(q, k, v, omega):
    d = q.shape[-1]
    m = omega.shape[0]
    scale = float(d) ** -0.25
    qs = q * scale
    ks = k * scale
    q_proj = torch.einsum("bhsd,md->bhsm", qs, omega)
    k_proj = torch.einsum("bhsd,md->bhsm", ks, omega)
    q_sq = 0.5 * torch.einsum("bhsd,bhsd->bhs", qs, qs)[..., None]
    k_sq = 0.5 * torch.einsum("bhsd,bhsd->bhs", ks, ks)[..., None]
    inv_sqrt_m = float(m) ** -0.5
    phi_q = torch.exp(q_proj - q_sq) * inv_sqrt_m + 1e-6
    phi_k = torch.exp(k_proj - k_sq) * inv_sqrt_m + 1e-6
    kv = torch.einsum("bhsm,bhsd->bhmd", phi_k, v)
    z  = torch.einsum("bhsm->bhm", phi_k)
    num = torch.einsum("bhqm,bhmd->bhqd", phi_q, kv)
    den = torch.einsum("bhqm,bhm->bhq", phi_q, z)[..., None] + 1e-6
    return num / den
```

```python
import sys
NAME='standalone__linear_kernel_rfa__decode_kernel'
HEAD='''; Kernarg layout for this problem (56 bytes, ptrs only, base s[0:1]):
'''
def gen(NB=4, W=4, lds=90000, stamps=False, pol='nt'):
    o=[]; a=o.append
    nwg=256
    tiles = 32768*32//16//(nwg*W)
    stride = W*4096
    assert tiles % NB == 0
    VOFK, VOFV = 1, 2
    DM = 4
    AM = 8
    ONE, NEGSEL = 12, 13
    PHIQ = 14
    KS = 16
    T = 32
    PR = 40
    GR = 44
    SQ = 48
    WW = 52
    DEN = 56
    ACC = 60
    AA = 64
    PK = 80
    KB = 84
    nv = KB + NB*16
    OM = 0
    VB = 16
    na = VB + NB*16
    acc_off = (nv+3)//4*4
    a(HEAD+f'; @launch grid=({nwg},1,1) block=({64*W},1,1) lds={lds}')
    a('.amdgcn_target "amdgcn-amd-amdhsa--gfx950"\n.text')
    a(f'.globl {NAME}\n.p2align 8\n.type {NAME},@function\n{NAME}:')
    a(f'  s_cmp_ge_u32 s2, {nwg}\n  s_cbranch_scc1 L_end')
    a('  s_load_dwordx2 s[8:9], s[0:1], 8')
    a('  s_load_dwordx2 s[12:13], s[0:1], 16')
    a('  s_load_dwordx2 s[16:17], s[0:1], 24')
    a('  s_load_dwordx2 s[20:21], s[0:1], 0')
    if stamps: a('  s_memrealtime s[50:51]')
    a('  v_lshrrev_b32 v3, 6, v0')
    a('  v_and_b32 v0, 63, v0')
    a('  v_readfirstlane_b32 s3, v3')
    a(f'  v_and_b32 v{T}, 15, v0')
    a(f'  v_lshrrev_b32 v{T+1}, 4, v0')
    a(f'  v_lshlrev_b32 v{VOFK}, 8, v{T}')
    a(f'  v_lshl_add_u32 v{VOFK}, v{T+1}, 4, v{VOFK}')
    a(f'  v_lshlrev_b32 v{VOFV}, 4, v{T}')
    a(f'  v_lshl_add_u32 v{VOFV}, v{T+1}, 10, v{VOFV}')
    a(f'  v_lshlrev_b32 v3, 4, v{T+1}')
    a('  s_mov_b32 s10, 0x10000000\n  s_mov_b32 s11, 0x20000')
    a('  s_mov_b32 s14, 0x10000000\n  s_mov_b32 s15, 0x20000')
    a('  s_mov_b32 s18, 4096\n  s_mov_b32 s19, 0x20000')
    a('  s_mov_b32 s22, 8192\n  s_mov_b32 s23, 0x20000')
    a('  s_lshl_b32 s36, s2, 20\n  s_lshl_b32 s37, s3, 12\n  s_add_u32 s36, s36, s37')
    a('  s_lshr_b32 s39, s2, 3\n  s_lshl_b32 s44, s39, 8')
    a('  s_waitcnt lgkmcnt(0)')
    def issueK(b):
        for j in range(4):
            r=KB+b*16+j*4
            a(f'  buffer_load_dwordx4 v[{r}:{r+3}], v{VOFK}, s[8:11], s36 offen offset:{j*64} {pol}')
    def issueV(b):
        for j in range(4):
            r=VB+b*16+j*4
            a(f'  buffer_load_dwordx4 a[{r}:{r+3}], v{VOFV}, s[12:15], s36 offen offset:{j*256} {pol}')
        a(f'  s_add_u32 s36, s36, {stride}')
    for j in range(4):
        a(f'  buffer_load_dwordx4 a[{OM+j*4}:{OM+j*4+3}], v{VOFK}, s[16:19], 0 offen offset:{j*64}')
    for j in range(4):
        a(f'  buffer_load_dwordx4 v[{AA+j*4}:{AA+j*4+3}], v3, s[20:23], s44 offen offset:{j*64}')
    for b in range(NB):
        issueK(b); issueV(b)
    a('  s_load_dwordx2 s[24:25], s[0:1], 48')
    a('  s_load_dwordx2 s[28:29], s[0:1], 32')
    a('  s_load_dwordx2 s[32:33], s[0:1], 40')
    a('  s_mov_b32 s26, 0x100000\n  s_mov_b32 s27, 0x20000')
    a('  s_mov_b32 s30, 8192\n  s_mov_b32 s31, 0x20000')
    a('  s_mov_b32 s34, 256\n  s_mov_b32 s35, 0x20000')
    a('  s_mov_b32 s40, 0x3e9837f0\n  s_mov_b32 s41, 0x3e9837f0\n  s_mov_b32 s42, 0x3fb8aa3b\n  s_mov_b32 s43, 0xffff0000')
    a(f'  v_lshlrev_b32 v{T+2}, 2, v{T+1}')
    a(f'  v_sub_u32 v{T+2}, v{T}, v{T+2}')
    for r in range(4):
        a(f'  v_cmp_eq_u32 vcc, {r}, v{T+2}\n  s_nop 1\n  v_cndmask_b32 v{DM+r}, 0, -1, vcc')
    a(f'  v_and_b32 v{T+3}, 1, v{T}')
    a(f'  v_cmp_eq_u32 vcc, 1, v{T+3}\n  v_mov_b32 v{T+4}, 0xffff\n  v_mov_b32 v{T+5}, s43\n  v_cndmask_b32 v{T+4}, v{T+4}, v{T+5}, vcc')
    a(f'  v_bfe_u32 v{T+3}, v{T}, 1, 2')
    for q in range(4):
        a(f'  v_cmp_eq_u32 vcc, {q}, v{T+3}\n  s_nop 1\n  v_cndmask_b32 v{AM+q}, 0, v{T+4}, vcc')
    a(f'  v_mov_b32 v{ONE}, 1.0')
    a(f'  v_cmp_lt_u32 vcc, 7, v{T}\n  s_nop 1\n  v_cndmask_b32 v{NEGSEL}, 0, -1.0, vcc')
    for r in range(4):
        a(f'  v_mov_b32 v{DEN+r}, 0\n  v_mov_b32 v{ACC+r}, 0')
    def feat(src, dst, fill=None):
        for j in range(4):
            for d in range(4):
                x=src+j*4+d; t=T+2*(d&1)+4*0
                t=T+2*d
                a(f'  v_lshlrev_b32 v{t}, 16, v{x}')
                a(f'  v_and_b32 v{t+1}, s43, v{x}')
            for d in range(4):
                t=T+2*d
                a(f'  v_pk_mul_f32 v[{t}:{t+1}], v[{t}:{t+1}], s[40:41]')
            for d in range(4):
                t=T+2*d
                a(f'  v_cvt_pk_bf16_f32 v{KS+j*4+d}, v{t}, v{t+1}')
            if j>0:
                jj=j-1
                k=KS+jj*4
                a(f'  v_mfma_f32_16x16x32_bf16 v[{GR}:{GR+3}], v[{k}:{k+3}], v[{k}:{k+3}], '+('0' if jj==0 else f'v[{GR}:{GR+3}]'))
                a(f'  v_mfma_f32_16x16x32_bf16 v[{PR}:{PR+3}], a[{OM+jj*4}:{OM+jj*4+3}], v[{k}:{k+3}], '+('0' if jj==0 else f'v[{PR}:{PR+3}]'))
        k=KS+12
        a(f'  v_mfma_f32_16x16x32_bf16 v[{GR}:{GR+3}], v[{k}:{k+3}], v[{k}:{k+3}], v[{GR}:{GR+3}]')
        a(f'  v_mfma_f32_16x16x32_bf16 v[{PR}:{PR+3}], a[{OM+12}:{OM+15}], v[{k}:{k+3}], v[{PR}:{PR+3}]')
        if fill: fill()
        else: a('  s_nop 3')
        a('  s_nop 2')
        a(f'  v_and_b32 v{T}, v{GR}, v{DM}')
        a(f'  v_and_or_b32 v{T}, v{GR+1}, v{DM+1}, v{T}')
        a(f'  v_and_or_b32 v{T}, v{GR+2}, v{DM+2}, v{T}')
        a(f'  v_and_or_b32 v{T}, v{GR+3}, v{DM+3}, v{T}')
        a(f'  v_cvt_pk_bf16_f32 v{PR}, 0, v{PR}')
        a(f'  v_cvt_pk_bf16_f32 v{PR+1}, 0, v{PR+1}')
        a(f'  v_mfma_f32_16x16x4_f32 v[{SQ}:{SQ+3}], v{ONE}, v{T}, 0')
        a(f'  v_cvt_pk_bf16_f32 v{PR+2}, 0, v{PR+2}')
        a(f'  v_cvt_pk_bf16_f32 v{PR+3}, 0, v{PR+3}')
        a('  s_nop 7')
        a(f'  v_cvt_pk_bf16_f32 v{T}, 0, v{SQ}')
        for r in range(4): a(f'  v_fma_f32 v{PR+r}, v{T}, -0.5, v{PR+r}')
        for r in range(4): a(f'  v_cvt_pk_bf16_f32 v{PR+r}, 0, v{PR+r}')
        for r in range(4): a(f'  v_fma_f32 v{PR+r}, v{PR+r}, s42, -2.0')
        for r in range(4): a(f'  v_exp_f32 v{PR+r}, v{PR+r}')
        a('  s_nop 0')
        for r in range(4): a(f'  v_cvt_pk_bf16_f32 v{PR+r}, 0, v{PR+r}')
        for r in range(4): a(f'  v_add_f32 v{PR+r}, 0x358637bd, v{PR+r}')
        a(f'  v_cvt_pk_bf16_f32 v{dst}, v{PR}, v{PR+1}')
        a(f'  v_cvt_pk_bf16_f32 v{dst+1}, v{PR+2}, v{PR+3}')
    a(f'  s_waitcnt vmcnt({NB*8})')
    feat(AA, PHIQ)
    def tile(b, issue, wk, wv):
        a(f'  s_waitcnt vmcnt({wk})')
        feat(KB+b*16, PK, (lambda: issueK(b)) if issue else None)
        a('  s_nop 1')
        a(f'  v_mfma_f32_16x16x16_bf16 v[{WW}:{WW+3}], v[{PK}:{PK+1}], v[{PHIQ}:{PHIQ+1}], 0')
        a(f'  v_mfma_f32_16x16x16_bf16 v[{DEN}:{DEN+3}], v[{PK}:{PK+1}], v[{PHIQ}:{PHIQ+1}], v[{DEN}:{DEN+3}]')
        a('  s_nop 6')
        for r in range(4): a(f'  v_cvt_pk_bf16_f32 v{T+r}, 0, v{WW+r}')
        for r in range(4): a(f'  v_fma_f32 v{T+r}, v{T+r}, v{NEGSEL}, v{WW+r}')
        for r in range(4): a(f'  v_cvt_pk_bf16_f32 v{T+r}, v{T+r}, v{T+r}')
        for r in range(4):
            for q in range(4):
                a(f'  v_and_b32 v{AA+r*4+q}, v{T+r}, v{AM+q}')
        a(f'  s_waitcnt vmcnt({wv})')
        a('  s_nop 0')
        for r in range(4):
            vb=VB+b*16+r*4
            a(f'  v_mfma_f32_16x16x32_bf16 v[{ACC}:{ACC+3}], v[{AA+r*4}:{AA+r*4+3}], a[{vb}:{vb+3}], v[{ACC}:{ACC+3}]')
        if issue: issueV(b)
    a(f'  s_mov_b32 s38, {tiles//NB-1}')
    a('L_loop:')
    for b in range(NB):
        tile(b, True, NB*8-4, NB*8-4)
    a('  s_sub_u32 s38, s38, 1\n  s_cmp_lg_u32 s38, 0\n  s_cbranch_scc1 L_loop')
    for b in range(NB):
        tile(b, False, (NB-b)*8-4, (NB-b)*8-8)
    if stamps: a('  s_memrealtime s[52:53]')
    a('  s_nop 7')
    a(f'  v_add_f32 v{DEN}, v{DEN}, v{DEN+1}\n  v_add_f32 v{DEN+2}, v{DEN+2}, v{DEN+3}')
    a(f'  v_lshlrev_b32 v{T}, 4, v0')
    a(f'  s_lshl_b32 s45, s3, 10')
    a(f'  v_add_f32 v{DEN}, v{DEN}, v{DEN+2}')
    a(f'  v_add_u32 v{T+1}, s45, v{T}')
    a(f'  v_lshrrev_b32 v{T+2}, 4, v0\n  s_lshl_b32 s45, s3, 2\n  v_add_lshl_u32 v{T+2}, v{T+2}, s45, 2')
    a(f'  ds_write_b128 v{T+1}, v[{ACC}:{ACC+3}]')
    a(f'  ds_write_b32 v{T+2}, v{DEN} offset:{W*1024}')
    a('  s_waitcnt lgkmcnt(0)\n  s_barrier')
    a('  s_cmp_lg_u32 s3, 0\n  s_cbranch_scc1 L_end')
    a(f'  v_and_b32 v{T+1}, 0x1ff, v{T}')
    a(f'  v_mov_b32 v{T+2}, 0')
    R=KB
    for i in range(2*W): a(f'  ds_read_b128 v[{R+i*4}:{R+i*4+3}], v{T+1} offset:{i*512}')
    D=AA
    for i in range(W): a(f'  ds_read_b128 v[{D+i*4}:{D+i*4+3}], v{T+2} offset:{W*1024+i*16}')
    a('  s_waitcnt lgkmcnt(0)')
    for i in range(1,2*W):
        for r in range(4): a(f'  v_add_f32 v{R+r}, v{R+r}, v{R+i*4+r}')
    for i in range(1,4*W): a(f'  v_add_f32 v{D}, v{D}, v{D+i}')
    a(f'  v_cmp_lt_u32 vcc, 31, v0\n  s_lshl_b32 s45, s2, 10\n  s_nop 0')
    for r in range(4): a(f'  v_cndmask_b32 v{R+r}, v{R+r}, v{D}, vcc')
    a(f'  buffer_store_dwordx4 v[{R}:{R+3}], v{T}, s[24:27], s45 offen sc1')
    a(f'  s_lshl_b32 s46, s39, 2\n  v_mov_b32 v{T+3}, s46\n  v_mov_b32 v{T+4}, 1')
    a('  s_mov_b64 s[48:49], exec\n  s_mov_b64 exec, 1')
    a('  s_waitcnt vmcnt(0)')
    a(f'  buffer_atomic_add v{T+4}, v{T+3}, s[32:35], 0 offen sc0')
    a('  s_waitcnt vmcnt(0)')
    a(f'  v_readfirstlane_b32 s46, v{T+4}')
    a('  s_mov_b64 exec, s[48:49]')
    if stamps:
        a('  s_memrealtime s[54:55]\n  s_getreg_b32 s56, hwreg(HW_REG_XCC_ID)\n  s_waitcnt lgkmcnt(0)')
        a(f'  v_mov_b32 v{KS}, s50\n  v_mov_b32 v{KS+1}, s51\n  v_mov_b32 v{KS+2}, s52\n  v_mov_b32 v{KS+3}, s53')
        a(f'  v_mov_b32 v{KS+4}, s54\n  v_mov_b32 v{KS+5}, s55\n  v_mov_b32 v{KS+6}, s56\n  v_mov_b32 v{KS+7}, 0')
        a(f'  s_lshl_b32 s47, s2, 6\n  s_add_u32 s47, s47, 0x80000\n  v_mov_b32 v{KS+8}, 0')
        a(f'  buffer_store_dwordx4 v[{KS}:{KS+3}], v{KS+8}, s[24:27], s47 offen')
        a(f'  buffer_store_dwordx4 v[{KS+4}:{KS+7}], v{KS+8}, s[24:27], s47 offen offset:16')
    a('  s_cmp_lg_u32 s46, 7\n  s_cbranch_scc1 L_end')
    a('  s_lshl_b32 s45, s39, 13')
    for p in range(8):
        if p==4: a('  s_add_u32 s45, s45, 4096')
        a(f'  buffer_load_dwordx4 v[{R+p*4}:{R+p*4+3}], v{T}, s[24:27], s45 offen offset:{(p&3)*1024} sc1')
    a('  s_waitcnt vmcnt(0)')
    for p in range(1,8):
        for r in range(4): a(f'  v_add_f32 v{R+r}, v{R+r}, v{R+p*4+r}')
    a('  s_nop 0')
    a(f'  v_readlane_b32 s46, v{R}, 32')
    a('  s_nop 1')
    a(f'  v_mov_b32 v{T+1}, s46')
    a(f'  v_add_f32 v{T+1}, 0x358637bd, v{T+1}')
    a(f'  v_rcp_f32 v{T+2}, v{T+1}')
    a('  s_nop 0')
    for r in range(4): a(f'  v_mul_f32 v{R+4+r}, v{R+r}, v{T+2}')
    for r in range(4): a(f'  v_fma_f32 v{R+8+r}, -v{R+4+r}, v{T+1}, v{R+r}')
    for r in range(4): a(f'  v_fma_f32 v{R+4+r}, v{R+8+r}, v{T+2}, v{R+4+r}')
    a(f'  v_cvt_pk_bf16_f32 v{R}, v{R+4}, v{R+5}\n  v_cvt_pk_bf16_f32 v{R+1}, v{R+6}, v{R+7}')
    a(f'  v_and_b32 v{T+3}, 15, v0\n  v_lshlrev_b32 v{T+3}, 4, v{T+3}\n  v_lshrrev_b32 v{T+4}, 4, v0\n  v_lshl_add_u32 v{T+3}, v{T+4}, 3, v{T+3}')
    a('  s_mov_b32 exec_hi, 0')
    a(f'  buffer_store_dwordx2 v[{R}:{R+1}], v{T+3}, s[28:31], s44 offen')
    if stamps:
        a('  s_waitcnt vmcnt(0)\n  s_memrealtime s[54:55]\n  s_waitcnt lgkmcnt(0)')
        a(f'  v_mov_b32 v{KS+4}, s54\n  v_mov_b32 v{KS+5}, s55')
        a(f'  buffer_store_dwordx2 v[{KS+4}:{KS+5}], v{KS+8}, s[24:27], s47 offen offset:32')
    a('L_end:\n  s_endpgm')
    a(f'''.section .rodata,"a"
.p2align 6
.amdhsa_kernel {NAME}
  .amdhsa_next_free_vgpr {acc_off+na}
  .amdhsa_next_free_sgpr 64
  .amdhsa_accum_offset {acc_off}
  .amdhsa_group_segment_fixed_size 0
  .amdhsa_kernarg_size 56
  .amdhsa_user_sgpr_count 2
  .amdhsa_user_sgpr_kernarg_segment_ptr 1
  .amdhsa_system_sgpr_workgroup_id_x 1
  .amdhsa_float_denorm_mode_32 3
.end_amdhsa_kernel
''')
    return '\n'.join(o)
if __name__=='__main__':
    import json
    kw = json.loads(sys.argv[1]) if len(sys.argv)>1 else {}
    print(gen(**kw))
```

```python
import sys
NAME='standalone__linear_kernel_rfa__decode_kernel'
HEAD='''; Kernarg layout for this problem (56 bytes, ptrs only, base s[0:1]):
'''
def gen(NB=4, W=4, lds=90000, stamps=False, pol='nt', dbgstamp=False, pat='A'):
    o=[]; a=o.append
    nwg=256
    tiles = 32768*32//16//(nwg*W)
    stride = W*4096
    assert tiles % NB == 0
    VOFK, VOFV = 1, 2
    DM = 4
    AM = 8
    ONE, NEGSEL = 12, 13
    PHIQ = 14
    KS = 16
    T = 32
    PR = 40
    GR = 44
    SQ = 48
    WW = 52
    DEN = 56
    ACC = 60
    AA = 64
    PK = 80
    KB = 84
    nv = KB + NB*16
    OM = 0
    VB = 16
    na = VB + NB*16
    acc_off = (nv+3)//4*4
    a(HEAD+f'; @launch grid=({nwg},1,1) block=({64*W},1,1) lds={lds}')
    a('.amdgcn_target "amdgcn-amd-amdhsa--gfx950"\n.text')
    a(f'.globl {NAME}\n.p2align 8\n.type {NAME},@function\n{NAME}:')
    a(f'  s_cmp_ge_u32 s2, {nwg}\n  s_cbranch_scc1 L_end')
    a('  s_load_dwordx2 s[8:9], s[0:1], 8')
    a('  s_load_dwordx2 s[12:13], s[0:1], 16')
    a('  s_load_dwordx2 s[16:17], s[0:1], 24')
    a('  s_load_dwordx2 s[20:21], s[0:1], 0')
    if stamps or dbgstamp: a('  s_memrealtime s[50:51]')
    a('  v_lshrrev_b32 v3, 6, v0')
    a('  v_and_b32 v0, 63, v0')
    a('  v_readfirstlane_b32 s3, v3')
    a(f'  v_and_b32 v{T}, 15, v0')
    a(f'  v_lshrrev_b32 v{T+1}, 4, v0')
    a(f'  v_lshlrev_b32 v{VOFK}, 8, v{T}')
    a(f'  v_lshl_add_u32 v{VOFK}, v{T+1}, 4, v{VOFK}')
    a(f'  v_lshlrev_b32 v{VOFV}, 4, v{T}')
    a(f'  v_lshl_add_u32 v{VOFV}, v{T+1}, 10, v{VOFV}')
    a(f'  v_lshlrev_b32 v3, 4, v{T+1}')
    a('  s_mov_b32 s10, 0x10000000\n  s_mov_b32 s11, 0x20000')
    a('  s_mov_b32 s14, 0x10000000\n  s_mov_b32 s15, 0x20000')
    a('  s_mov_b32 s18, 4096\n  s_mov_b32 s19, 0x20000')
    a('  s_mov_b32 s22, 8192\n  s_mov_b32 s23, 0x20000')
    a('  s_lshr_b32 s39, s2, 3\n  s_lshl_b32 s44, s39, 8')
    if pat=='A':
        a('  s_lshl_b32 s36, s2, 20\n  s_lshl_b32 s37, s3, 12\n  s_add_u32 s36, s36, s37')
    elif pat=='C':
        a('  s_lshl_b32 s36, s39, 23\n  s_and_b32 s37, s2, 7\n  s_lshl_b32 s37, s37, 14\n  s_add_u32 s36, s36, s37\n  s_lshl_b32 s37, s3, 12\n  s_add_u32 s36, s36, s37')
        stride = 128*1024
    elif pat=='F':
        a('  s_lshr_b32 s36, s2, 1\n  s_lshl_b32 s36, s36, 21\n  s_and_b32 s37, s2, 1\n  s_lshl_b32 s37, s37, 14\n  s_add_u32 s36, s36, s37\n  s_lshl_b32 s37, s3, 12\n  s_add_u32 s36, s36, s37')
        stride = 32*1024
    elif pat=='E':
        a('  s_lshl_b32 s36, s39, 23\n  s_and_b32 s37, s2, 1\n  s_lshl_b32 s37, s37, 12\n  s_add_u32 s36, s36, s37\n  s_and_b32 s37, s2, 6\n  s_lshl_b32 s37, s37, 14\n  s_add_u32 s36, s36, s37\n  s_lshl_b32 s37, s3, 13\n  s_add_u32 s36, s36, s37')
        stride = 128*1024
    a('  s_waitcnt lgkmcnt(0)')
    def issueK(b):
        for j in range(4):
            r=KB+b*16+j*4
            a(f'  buffer_load_dwordx4 v[{r}:{r+3}], v{VOFK}, s[8:11], s36 offen offset:{j*64} {pol}')
    def issueV(b):
        for j in range(4):
            r=VB+b*16+j*4
            a(f'  buffer_load_dwordx4 a[{r}:{r+3}], v{VOFV}, s[12:15], s36 offen offset:{j*256} {pol}')
        a(f'  s_add_u32 s36, s36, {stride}')
    for j in range(4):
        a(f'  buffer_load_dwordx4 a[{OM+j*4}:{OM+j*4+3}], v{VOFK}, s[16:19], 0 offen offset:{j*64}')
    for j in range(4):
        a(f'  buffer_load_dwordx4 v[{AA+j*4}:{AA+j*4+3}], v3, s[20:23], s44 offen offset:{j*64}')
    for b in range(NB):
        issueK(b); issueV(b)
    a('  s_load_dwordx2 s[24:25], s[0:1], 48')
    a('  s_load_dwordx2 s[28:29], s[0:1], 32')
    a('  s_load_dwordx2 s[32:33], s[0:1], 40')
    a('  s_mov_b32 s26, 0x100000\n  s_mov_b32 s27, 0x20000')
    a('  s_mov_b32 s30, 8192\n  s_mov_b32 s31, 0x20000')
    a('  s_mov_b32 s34, 256\n  s_mov_b32 s35, 0x20000')
    a('  s_mov_b32 s40, 0x3e9837f0\n  s_mov_b32 s41, 0x3e9837f0\n  s_mov_b32 s42, 0x3fb8aa3b\n  s_mov_b32 s43, 0xffff0000')
    a(f'  v_lshlrev_b32 v{T+2}, 2, v{T+1}')
    a(f'  v_sub_u32 v{T+2}, v{T}, v{T+2}')
    for r in range(4):
        a(f'  v_cmp_eq_u32 vcc, {r}, v{T+2}\n  s_nop 1\n  v_cndmask_b32 v{DM+r}, 0, -1, vcc')
    a(f'  v_and_b32 v{T+3}, 1, v{T}')
    a(f'  v_cmp_eq_u32 vcc, 1, v{T+3}\n  v_mov_b32 v{T+4}, 0xffff\n  v_mov_b32 v{T+5}, s43\n  v_cndmask_b32 v{T+4}, v{T+4}, v{T+5}, vcc')
    a(f'  v_bfe_u32 v{T+3}, v{T}, 1, 2')
    for q in range(4):
        a(f'  v_cmp_eq_u32 vcc, {q}, v{T+3}\n  s_nop 1\n  v_cndmask_b32 v{AM+q}, 0, v{T+4}, vcc')
    a(f'  v_mov_b32 v{ONE}, 1.0')
    a(f'  v_cmp_lt_u32 vcc, 7, v{T}\n  s_nop 1\n  v_cndmask_b32 v{NEGSEL}, 0, -1.0, vcc')
    for r in range(4):
        a(f'  v_mov_b32 v{DEN+r}, 0\n  v_mov_b32 v{ACC+r}, 0')
    def feat(src, dst, fill=None):
        for j in range(4):
            for d in range(4):
                x=src+j*4+d; t=T+2*(d&1)+4*0
                t=T+2*d
                a(f'  v_lshlrev_b32 v{t}, 16, v{x}')
                a(f'  v_and_b32 v{t+1}, s43, v{x}')
            for d in range(4):
                t=T+2*d
                a(f'  v_pk_mul_f32 v[{t}:{t+1}], v[{t}:{t+1}], s[40:41]')
            for d in range(4):
                t=T+2*d
                a(f'  v_cvt_pk_bf16_f32 v{KS+j*4+d}, v{t}, v{t+1}')
            if j>0:
                jj=j-1
                k=KS+jj*4
                a(f'  v_mfma_f32_16x16x32_bf16 v[{GR}:{GR+3}], v[{k}:{k+3}], v[{k}:{k+3}], '+('0' if jj==0 else f'v[{GR}:{GR+3}]'))
                a(f'  v_mfma_f32_16x16x32_bf16 v[{PR}:{PR+3}], a[{OM+jj*4}:{OM+jj*4+3}], v[{k}:{k+3}], '+('0' if jj==0 else f'v[{PR}:{PR+3}]'))
        k=KS+12
        a(f'  v_mfma_f32_16x16x32_bf16 v[{GR}:{GR+3}], v[{k}:{k+3}], v[{k}:{k+3}], v[{GR}:{GR+3}]')
        a(f'  v_mfma_f32_16x16x32_bf16 v[{PR}:{PR+3}], a[{OM+12}:{OM+15}], v[{k}:{k+3}], v[{PR}:{PR+3}]')
        if fill: fill()
        else: a('  s_nop 3')
        a('  s_nop 2')
        a(f'  v_and_b32 v{T}, v{GR}, v{DM}')
        a(f'  v_and_or_b32 v{T}, v{GR+1}, v{DM+1}, v{T}')
        a(f'  v_and_or_b32 v{T}, v{GR+2}, v{DM+2}, v{T}')
        a(f'  v_and_or_b32 v{T}, v{GR+3}, v{DM+3}, v{T}')
        a(f'  v_cvt_pk_bf16_f32 v{PR}, 0, v{PR}')
        a(f'  v_cvt_pk_bf16_f32 v{PR+1}, 0, v{PR+1}')
        a(f'  v_mfma_f32_16x16x4_f32 v[{SQ}:{SQ+3}], v{ONE}, v{T}, 0')
        a(f'  v_cvt_pk_bf16_f32 v{PR+2}, 0, v{PR+2}')
        a(f'  v_cvt_pk_bf16_f32 v{PR+3}, 0, v{PR+3}')
        a('  s_nop 7')
        a(f'  v_cvt_pk_bf16_f32 v{T}, 0, v{SQ}')
        for r in range(4): a(f'  v_fma_f32 v{PR+r}, v{T}, -0.5, v{PR+r}')
        for r in range(4): a(f'  v_cvt_pk_bf16_f32 v{PR+r}, 0, v{PR+r}')
        for r in range(4): a(f'  v_fma_f32 v{PR+r}, v{PR+r}, s42, -2.0')
        for r in range(4): a(f'  v_exp_f32 v{PR+r}, v{PR+r}')
        a('  s_nop 0')
        for r in range(4): a(f'  v_cvt_pk_bf16_f32 v{PR+r}, 0, v{PR+r}')
        for r in range(4): a(f'  v_add_f32 v{PR+r}, 0x358637bd, v{PR+r}')
        a(f'  v_cvt_pk_bf16_f32 v{dst}, v{PR}, v{PR+1}')
        a(f'  v_cvt_pk_bf16_f32 v{dst+1}, v{PR+2}, v{PR+3}')
    a(f'  s_waitcnt vmcnt({NB*8})')
    feat(AA, PHIQ)
    def tile(b, issue, wk, wv):
        a(f'  s_waitcnt vmcnt({wk})')
        feat(KB+b*16, PK, (lambda: issueK(b)) if issue else None)
        a('  s_nop 1')
        a(f'  v_mfma_f32_16x16x16_bf16 v[{WW}:{WW+3}], v[{PK}:{PK+1}], v[{PHIQ}:{PHIQ+1}], 0')
        a(f'  v_mfma_f32_16x16x16_bf16 v[{DEN}:{DEN+3}], v[{PK}:{PK+1}], v[{PHIQ}:{PHIQ+1}], v[{DEN}:{DEN+3}]')
        a('  s_nop 6')
        for r in range(4): a(f'  v_cvt_pk_bf16_f32 v{T+r}, 0, v{WW+r}')
        for r in range(4): a(f'  v_fma_f32 v{T+r}, v{T+r}, v{NEGSEL}, v{WW+r}')
        for r in range(4): a(f'  v_cvt_pk_bf16_f32 v{T+r}, v{T+r}, v{T+r}')
        for r in range(4):
            for q in range(4):
                a(f'  v_and_b32 v{AA+r*4+q}, v{T+r}, v{AM+q}')
        a(f'  s_waitcnt vmcnt({wv})')
        a('  s_nop 0')
        for r in range(4):
            vb=VB+b*16+r*4
            a(f'  v_mfma_f32_16x16x32_bf16 v[{ACC}:{ACC+3}], v[{AA+r*4}:{AA+r*4+3}], a[{vb}:{vb+3}], v[{ACC}:{ACC+3}]')
        if issue: issueV(b)
    a(f'  s_mov_b32 s38, {tiles//NB-1}')
    a('L_loop:')
    for b in range(NB):
        tile(b, True, NB*8-4, NB*8-4)
    a('  s_sub_u32 s38, s38, 1\n  s_cmp_lg_u32 s38, 0\n  s_cbranch_scc1 L_loop')
    for b in range(NB):
        tile(b, False, (NB-b)*8-4, (NB-b)*8-8)
    if stamps or dbgstamp: a('  s_memrealtime s[52:53]')
    a('  s_nop 7')
    a(f'  v_add_f32 v{DEN}, v{DEN}, v{DEN+1}\n  v_add_f32 v{DEN+2}, v{DEN+2}, v{DEN+3}')
    a(f'  v_lshlrev_b32 v{T}, 4, v0')
    a(f'  s_lshl_b32 s45, s3, 10')
    a(f'  v_add_f32 v{DEN}, v{DEN}, v{DEN+2}')
    a(f'  v_add_u32 v{T+1}, s45, v{T}')
    a(f'  v_lshrrev_b32 v{T+2}, 4, v0\n  s_lshl_b32 s45, s3, 2\n  v_add_lshl_u32 v{T+2}, v{T+2}, s45, 2')
    a(f'  ds_write_b128 v{T+1}, v[{ACC}:{ACC+3}]')
    a(f'  ds_write_b32 v{T+2}, v{DEN} offset:{W*1024}')
    a('  s_waitcnt lgkmcnt(0)\n  s_barrier')
    a('  s_cmp_lg_u32 s3, 0\n  s_cbranch_scc1 L_end')
    a(f'  v_and_b32 v{T+1}, 0x1ff, v{T}')
    a(f'  v_mov_b32 v{T+2}, 0')
    R=KB
    for i in range(2*W): a(f'  ds_read_b128 v[{R+i*4}:{R+i*4+3}], v{T+1} offset:{i*512}')
    D=AA
    for i in range(W): a(f'  ds_read_b128 v[{D+i*4}:{D+i*4+3}], v{T+2} offset:{W*1024+i*16}')
    a('  s_waitcnt lgkmcnt(0)')
    for i in range(1,2*W):
        for r in range(4): a(f'  v_add_f32 v{R+r}, v{R+r}, v{R+i*4+r}')
    for i in range(1,4*W): a(f'  v_add_f32 v{D}, v{D}, v{D+i}')
    a(f'  v_cmp_lt_u32 vcc, 31, v0\n  s_lshl_b32 s45, s2, 10\n  s_nop 0')
    for r in range(4): a(f'  v_cndmask_b32 v{R+r}, v{R+r}, v{D}, vcc')
    a(f'  buffer_store_dwordx4 v[{R}:{R+3}], v{T}, s[24:27], s45 offen sc1')
    a(f'  s_lshl_b32 s46, s39, 2\n  s_add_u32 s46, s46, 128\n  v_mov_b32 v{T+3}, s46\n  v_mov_b32 v{T+4}, 1')
    a('  s_mov_b64 s[48:49], exec\n  s_mov_b64 exec, 1')
    a('  s_waitcnt vmcnt(0)')
    a(f'  buffer_atomic_add v{T+4}, v{T+3}, s[32:35], 0 offen sc0')
    a('  s_waitcnt vmcnt(0)')
    a(f'  v_readfirstlane_b32 s46, v{T+4}')
    a('  s_mov_b64 exec, s[48:49]')
    if stamps:
        a('  s_memrealtime s[54:55]\n  s_getreg_b32 s56, hwreg(HW_REG_XCC_ID)\n  s_waitcnt lgkmcnt(0)')
        a(f'  v_mov_b32 v{KS}, s50\n  v_mov_b32 v{KS+1}, s51\n  v_mov_b32 v{KS+2}, s52\n  v_mov_b32 v{KS+3}, s53')
        a(f'  v_mov_b32 v{KS+4}, s54\n  v_mov_b32 v{KS+5}, s55\n  v_mov_b32 v{KS+6}, s56\n  v_mov_b32 v{KS+7}, 0')
        a(f'  s_lshl_b32 s47, s2, 6\n  s_add_u32 s47, s47, 0x80000\n  v_mov_b32 v{KS+8}, 0')
        a(f'  buffer_store_dwordx4 v[{KS}:{KS+3}], v{KS+8}, s[24:27], s47 offen')
        a(f'  buffer_store_dwordx4 v[{KS+4}:{KS+7}], v{KS+8}, s[24:27], s47 offen offset:16')
    if dbgstamp:
        a('  s_not_b32 s54, s50\n  s_atomic_umax s54, s[32:33], 0\n  s_atomic_umax s52, s[32:33], 4\n  s_not_b32 s55, s52\n  s_atomic_umax s55, s[32:33], 12\n  s_sub_u32 s56, s52, s50\n  s_atomic_add s56, s[32:33], 16\n s_waitcnt lgkmcnt(0)')
    a('  s_cmp_lg_u32 s46, 7\n  s_cbranch_scc1 L_end')
    a('  s_lshl_b32 s45, s39, 13')
    for p in range(8):
        if p==4: a('  s_add_u32 s45, s45, 4096')
        a(f'  buffer_load_dwordx4 v[{R+p*4}:{R+p*4+3}], v{T}, s[24:27], s45 offen offset:{(p&3)*1024} sc1')
    a('  s_waitcnt vmcnt(0)')
    for p in range(1,8):
        for r in range(4): a(f'  v_add_f32 v{R+r}, v{R+r}, v{R+p*4+r}')
    a('  s_nop 0')
    a(f'  v_readlane_b32 s46, v{R}, 32')
    a('  s_nop 1')
    a(f'  v_mov_b32 v{T+1}, s46')
    a(f'  v_add_f32 v{T+1}, 0x358637bd, v{T+1}')
    a(f'  v_rcp_f32 v{T+2}, v{T+1}')
    a('  s_nop 0')
    for r in range(4): a(f'  v_mul_f32 v{R+4+r}, v{R+r}, v{T+2}')
    for r in range(4): a(f'  v_fma_f32 v{R+8+r}, -v{R+4+r}, v{T+1}, v{R+r}')
    for r in range(4): a(f'  v_fma_f32 v{R+4+r}, v{R+8+r}, v{T+2}, v{R+4+r}')
    a(f'  v_cvt_pk_bf16_f32 v{R}, v{R+4}, v{R+5}\n  v_cvt_pk_bf16_f32 v{R+1}, v{R+6}, v{R+7}')
    a(f'  v_and_b32 v{T+3}, 15, v0\n  v_lshlrev_b32 v{T+3}, 4, v{T+3}\n  v_lshrrev_b32 v{T+4}, 4, v0\n  v_lshl_add_u32 v{T+3}, v{T+4}, 3, v{T+3}')
    a('  s_mov_b32 exec_hi, 0')
    a(f'  buffer_store_dwordx2 v[{R}:{R+1}], v{T+3}, s[28:31], s44 offen')
    if stamps:
        a('  s_waitcnt vmcnt(0)\n  s_memrealtime s[54:55]\n  s_waitcnt lgkmcnt(0)')
        a(f'  v_mov_b32 v{KS+4}, s54\n  v_mov_b32 v{KS+5}, s55')
        a(f'  buffer_store_dwordx2 v[{KS+4}:{KS+5}], v{KS+8}, s[24:27], s47 offen offset:32')
    if dbgstamp:
        a('  s_waitcnt vmcnt(0)\n  s_memrealtime s[54:55]\n  s_waitcnt lgkmcnt(0)\n  s_atomic_umax s54, s[32:33], 8\n s_waitcnt lgkmcnt(0)')
    a('L_end:\n  s_endpgm')
    a(f'''.section .rodata,"a"
.p2align 6
.amdhsa_kernel {NAME}
  .amdhsa_next_free_vgpr {acc_off+na}
  .amdhsa_next_free_sgpr 64
  .amdhsa_accum_offset {acc_off}
  .amdhsa_group_segment_fixed_size 0
  .amdhsa_kernarg_size 56
  .amdhsa_user_sgpr_count 2
  .amdhsa_user_sgpr_kernarg_segment_ptr 1
  .amdhsa_system_sgpr_workgroup_id_x 1
  .amdhsa_float_denorm_mode_32 3
.end_amdhsa_kernel
''')
    return '\n'.join(o)
if __name__=='__main__':
    import json
    kw = json.loads(sys.argv[1]) if len(sys.argv)>1 else {}
    print(gen(**kw))
```

```python
import sys
NAME='standalone__linear_kernel_rfa__decode_kernel'
HEAD='''; Kernarg layout for this problem (56 bytes, ptrs only, base s[0:1]):
'''
def gen(NB=4, W=4, lds=90000, stamps=False, pol='nt', dbgstamp=False, pat='A', diaghold=0):
    o=[]; a=o.append
    nwg=256
    tiles = 32768*32//16//(nwg*W)
    stride = W*4096
    assert tiles % NB == 0
    VOFK, VOFV = 1, 2
    DM = 4
    AM = 8
    ONE, NEGSEL = 12, 13
    PHIQ = 14
    KS = 16
    T = 32
    PR = 40
    GR = 44
    SQ = 48
    WW = 52
    DEN = 56
    ACC = 60
    AA = 64
    PK = 80
    KB = 84
    nv = KB + NB*16
    OM = 0
    VB = 16
    na = VB + NB*16
    acc_off = (nv+3)//4*4
    a(HEAD+f'; @launch grid=({nwg},1,1) block=({64*W},1,1) lds={lds}')
    a('.amdgcn_target "amdgcn-amd-amdhsa--gfx950"\n.text')
    a(f'.globl {NAME}\n.p2align 8\n.type {NAME},@function\n{NAME}:')
    a(f'  s_cmp_ge_u32 s2, {nwg}\n  s_cbranch_scc1 L_end')
    a('  s_load_dwordx2 s[8:9], s[0:1], 8')
    a('  s_load_dwordx2 s[12:13], s[0:1], 16')
    a('  s_load_dwordx2 s[16:17], s[0:1], 24')
    a('  s_load_dwordx2 s[20:21], s[0:1], 0')
    if stamps or dbgstamp or diaghold: a('  s_memrealtime s[50:51]')
    a('  v_lshrrev_b32 v3, 6, v0')
    a('  v_and_b32 v0, 63, v0')
    a('  v_readfirstlane_b32 s3, v3')
    a(f'  v_and_b32 v{T}, 15, v0')
    a(f'  v_lshrrev_b32 v{T+1}, 4, v0')
    a(f'  v_lshlrev_b32 v{VOFK}, 8, v{T}')
    a(f'  v_lshl_add_u32 v{VOFK}, v{T+1}, 4, v{VOFK}')
    a(f'  v_lshlrev_b32 v{VOFV}, 4, v{T}')
    a(f'  v_lshl_add_u32 v{VOFV}, v{T+1}, 10, v{VOFV}')
    a(f'  v_lshlrev_b32 v3, 4, v{T+1}')
    a('  s_mov_b32 s10, 0x10000000\n  s_mov_b32 s11, 0x20000')
    a('  s_mov_b32 s14, 0x10000000\n  s_mov_b32 s15, 0x20000')
    a('  s_mov_b32 s18, 4096\n  s_mov_b32 s19, 0x20000')
    a('  s_mov_b32 s22, 8192\n  s_mov_b32 s23, 0x20000')
    a('  s_lshr_b32 s39, s2, 3\n  s_lshl_b32 s44, s39, 8')
    if pat=='A':
        a('  s_lshl_b32 s36, s2, 20\n  s_lshl_b32 s37, s3, 12\n  s_add_u32 s36, s36, s37')
    elif pat=='C':
        a('  s_lshl_b32 s36, s39, 23\n  s_and_b32 s37, s2, 7\n  s_lshl_b32 s37, s37, 14\n  s_add_u32 s36, s36, s37\n  s_lshl_b32 s37, s3, 12\n  s_add_u32 s36, s36, s37')
        stride = 128*1024
    elif pat=='F':
        a('  s_lshr_b32 s36, s2, 1\n  s_lshl_b32 s36, s36, 21\n  s_and_b32 s37, s2, 1\n  s_lshl_b32 s37, s37, 14\n  s_add_u32 s36, s36, s37\n  s_lshl_b32 s37, s3, 12\n  s_add_u32 s36, s36, s37')
        stride = 32*1024
    elif pat=='E':
        a('  s_lshl_b32 s36, s39, 23\n  s_and_b32 s37, s2, 1\n  s_lshl_b32 s37, s37, 12\n  s_add_u32 s36, s36, s37\n  s_and_b32 s37, s2, 6\n  s_lshl_b32 s37, s37, 14\n  s_add_u32 s36, s36, s37\n  s_lshl_b32 s37, s3, 13\n  s_add_u32 s36, s36, s37')
        stride = 128*1024
    a('  s_waitcnt lgkmcnt(0)')
    def issueK(b):
        for j in range(4):
            r=KB+b*16+j*4
            a(f'  buffer_load_dwordx4 v[{r}:{r+3}], v{VOFK}, s[8:11], s36 offen offset:{j*64} {pol}')
    def issueV(b):
        for j in range(4):
            r=VB+b*16+j*4
            a(f'  buffer_load_dwordx4 a[{r}:{r+3}], v{VOFV}, s[12:15], s36 offen offset:{j*256} {pol}')
        a(f'  s_add_u32 s36, s36, {stride}')
    for j in range(4):
        a(f'  buffer_load_dwordx4 a[{OM+j*4}:{OM+j*4+3}], v{VOFK}, s[16:19], 0 offen offset:{j*64}')
    for j in range(4):
        a(f'  buffer_load_dwordx4 v[{AA+j*4}:{AA+j*4+3}], v3, s[20:23], s44 offen offset:{j*64}')
    for b in range(NB):
        issueK(b); issueV(b)
    a('  s_load_dwordx2 s[24:25], s[0:1], 48')
    a('  s_load_dwordx2 s[28:29], s[0:1], 32')
    a('  s_load_dwordx2 s[32:33], s[0:1], 40')
    a('  s_mov_b32 s26, 0x100000\n  s_mov_b32 s27, 0x20000')
    a('  s_mov_b32 s30, 8192\n  s_mov_b32 s31, 0x20000')
    a('  s_mov_b32 s34, 256\n  s_mov_b32 s35, 0x20000')
    a('  s_mov_b32 s40, 0x3e9837f0\n  s_mov_b32 s41, 0x3e9837f0\n  s_mov_b32 s42, 0x3fb8aa3b\n  s_mov_b32 s43, 0xffff0000')
    a(f'  v_lshlrev_b32 v{T+2}, 2, v{T+1}')
    a(f'  v_sub_u32 v{T+2}, v{T}, v{T+2}')
    for r in range(4):
        a(f'  v_cmp_eq_u32 vcc, {r}, v{T+2}\n  s_nop 1\n  v_cndmask_b32 v{DM+r}, 0, -1, vcc')
    a(f'  v_and_b32 v{T+3}, 1, v{T}')
    a(f'  v_cmp_eq_u32 vcc, 1, v{T+3}\n  v_mov_b32 v{T+4}, 0xffff\n  v_mov_b32 v{T+5}, s43\n  v_cndmask_b32 v{T+4}, v{T+4}, v{T+5}, vcc')
    a(f'  v_bfe_u32 v{T+3}, v{T}, 1, 2')
    for q in range(4):
        a(f'  v_cmp_eq_u32 vcc, {q}, v{T+3}\n  s_nop 1\n  v_cndmask_b32 v{AM+q}, 0, v{T+4}, vcc')
    a(f'  v_mov_b32 v{ONE}, 1.0')
    a(f'  v_cmp_lt_u32 vcc, 7, v{T}\n  s_nop 1\n  v_cndmask_b32 v{NEGSEL}, 0, -1.0, vcc')
    for r in range(4):
        a(f'  v_mov_b32 v{DEN+r}, 0\n  v_mov_b32 v{ACC+r}, 0')
    def feat(src, dst, fill=None):
        for j in range(4):
            for d in range(4):
                x=src+j*4+d; t=T+2*(d&1)+4*0
                t=T+2*d
                a(f'  v_lshlrev_b32 v{t}, 16, v{x}')
                a(f'  v_and_b32 v{t+1}, s43, v{x}')
            for d in range(4):
                t=T+2*d
                a(f'  v_pk_mul_f32 v[{t}:{t+1}], v[{t}:{t+1}], s[40:41]')
            for d in range(4):
                t=T+2*d
                a(f'  v_cvt_pk_bf16_f32 v{KS+j*4+d}, v{t}, v{t+1}')
            if j>0:
                jj=j-1
                k=KS+jj*4
                a(f'  v_mfma_f32_16x16x32_bf16 v[{GR}:{GR+3}], v[{k}:{k+3}], v[{k}:{k+3}], '+('0' if jj==0 else f'v[{GR}:{GR+3}]'))
                a(f'  v_mfma_f32_16x16x32_bf16 v[{PR}:{PR+3}], a[{OM+jj*4}:{OM+jj*4+3}], v[{k}:{k+3}], '+('0' if jj==0 else f'v[{PR}:{PR+3}]'))
        k=KS+12
        a(f'  v_mfma_f32_16x16x32_bf16 v[{GR}:{GR+3}], v[{k}:{k+3}], v[{k}:{k+3}], v[{GR}:{GR+3}]')
        a(f'  v_mfma_f32_16x16x32_bf16 v[{PR}:{PR+3}], a[{OM+12}:{OM+15}], v[{k}:{k+3}], v[{PR}:{PR+3}]')
        if fill: fill()
        else: a('  s_nop 3')
        a('  s_nop 2')
        a(f'  v_and_b32 v{T}, v{GR}, v{DM}')
        a(f'  v_and_or_b32 v{T}, v{GR+1}, v{DM+1}, v{T}')
        a(f'  v_and_or_b32 v{T}, v{GR+2}, v{DM+2}, v{T}')
        a(f'  v_and_or_b32 v{T}, v{GR+3}, v{DM+3}, v{T}')
        a(f'  v_cvt_pk_bf16_f32 v{PR}, 0, v{PR}')
        a(f'  v_cvt_pk_bf16_f32 v{PR+1}, 0, v{PR+1}')
        a(f'  v_mfma_f32_16x16x4_f32 v[{SQ}:{SQ+3}], v{ONE}, v{T}, 0')
        a(f'  v_cvt_pk_bf16_f32 v{PR+2}, 0, v{PR+2}')
        a(f'  v_cvt_pk_bf16_f32 v{PR+3}, 0, v{PR+3}')
        a('  s_nop 7')
        a(f'  v_cvt_pk_bf16_f32 v{T}, 0, v{SQ}')
        for r in range(4): a(f'  v_fma_f32 v{PR+r}, v{T}, -0.5, v{PR+r}')
        for r in range(4): a(f'  v_cvt_pk_bf16_f32 v{PR+r}, 0, v{PR+r}')
        for r in range(4): a(f'  v_fma_f32 v{PR+r}, v{PR+r}, s42, -2.0')
        for r in range(4): a(f'  v_exp_f32 v{PR+r}, v{PR+r}')
        a('  s_nop 0')
        for r in range(4): a(f'  v_cvt_pk_bf16_f32 v{PR+r}, 0, v{PR+r}')
        for r in range(4): a(f'  v_add_f32 v{PR+r}, 0x358637bd, v{PR+r}')
        a(f'  v_cvt_pk_bf16_f32 v{dst}, v{PR}, v{PR+1}')
        a(f'  v_cvt_pk_bf16_f32 v{dst+1}, v{PR+2}, v{PR+3}')
    a(f'  s_waitcnt vmcnt({NB*8})')
    feat(AA, PHIQ)
    def tile(b, issue, wk, wv):
        a(f'  s_waitcnt vmcnt({wk})')
        feat(KB+b*16, PK, (lambda: issueK(b)) if issue else None)
        a('  s_nop 1')
        a(f'  v_mfma_f32_16x16x16_bf16 v[{WW}:{WW+3}], v[{PK}:{PK+1}], v[{PHIQ}:{PHIQ+1}], 0')
        a(f'  v_mfma_f32_16x16x16_bf16 v[{DEN}:{DEN+3}], v[{PK}:{PK+1}], v[{PHIQ}:{PHIQ+1}], v[{DEN}:{DEN+3}]')
        a('  s_nop 6')
        for r in range(4): a(f'  v_cvt_pk_bf16_f32 v{T+r}, 0, v{WW+r}')
        for r in range(4): a(f'  v_fma_f32 v{T+r}, v{T+r}, v{NEGSEL}, v{WW+r}')
        for r in range(4): a(f'  v_cvt_pk_bf16_f32 v{T+r}, v{T+r}, v{T+r}')
        for r in range(4):
            for q in range(4):
                a(f'  v_and_b32 v{AA+r*4+q}, v{T+r}, v{AM+q}')
        a(f'  s_waitcnt vmcnt({wv})')
        a('  s_nop 0')
        for r in range(4):
            vb=VB+b*16+r*4
            a(f'  v_mfma_f32_16x16x32_bf16 v[{ACC}:{ACC+3}], v[{AA+r*4}:{AA+r*4+3}], a[{vb}:{vb+3}], v[{ACC}:{ACC+3}]')
        if issue: issueV(b)
    a(f'  s_mov_b32 s38, {tiles//NB-1}')
    a('L_loop:')
    for b in range(NB):
        tile(b, True, NB*8-4, NB*8-4)
    a('  s_sub_u32 s38, s38, 1\n  s_cmp_lg_u32 s38, 0\n  s_cbranch_scc1 L_loop')
    for b in range(NB):
        tile(b, False, (NB-b)*8-4, (NB-b)*8-8)
    if stamps or dbgstamp: a('  s_memrealtime s[52:53]')
    a('  s_nop 7')
    a(f'  v_add_f32 v{DEN}, v{DEN}, v{DEN+1}\n  v_add_f32 v{DEN+2}, v{DEN+2}, v{DEN+3}')
    a(f'  v_lshlrev_b32 v{T}, 4, v0')
    a(f'  s_lshl_b32 s45, s3, 10')
    a(f'  v_add_f32 v{DEN}, v{DEN}, v{DEN+2}')
    a(f'  v_add_u32 v{T+1}, s45, v{T}')
    a(f'  v_lshrrev_b32 v{T+2}, 4, v0\n  s_lshl_b32 s45, s3, 2\n  v_add_lshl_u32 v{T+2}, v{T+2}, s45, 2')
    a(f'  ds_write_b128 v{T+1}, v[{ACC}:{ACC+3}]')
    a(f'  ds_write_b32 v{T+2}, v{DEN} offset:{W*1024}')
    a('  s_waitcnt lgkmcnt(0)\n  s_barrier')
    a('  s_cmp_lg_u32 s3, 0\n  s_cbranch_scc1 L_end')
    a(f'  v_and_b32 v{T+1}, 0x1ff, v{T}')
    a(f'  v_mov_b32 v{T+2}, 0')
    R=KB
    for i in range(2*W): a(f'  ds_read_b128 v[{R+i*4}:{R+i*4+3}], v{T+1} offset:{i*512}')
    D=AA
    for i in range(W): a(f'  ds_read_b128 v[{D+i*4}:{D+i*4+3}], v{T+2} offset:{W*1024+i*16}')
    a('  s_waitcnt lgkmcnt(0)')
    for i in range(1,2*W):
        for r in range(4): a(f'  v_add_f32 v{R+r}, v{R+r}, v{R+i*4+r}')
    for i in range(1,4*W): a(f'  v_add_f32 v{D}, v{D}, v{D+i}')
    a(f'  v_cmp_lt_u32 vcc, 31, v0\n  s_lshl_b32 s45, s2, 10\n  s_nop 0')
    for r in range(4): a(f'  v_cndmask_b32 v{R+r}, v{R+r}, v{D}, vcc')
    a(f'  buffer_store_dwordx4 v[{R}:{R+3}], v{T}, s[24:27], s45 offen sc1')
    a(f'  s_lshl_b32 s46, s39, 2\n  s_add_u32 s46, s46, 128\n  v_mov_b32 v{T+3}, s46\n  v_mov_b32 v{T+4}, 1')
    a('  s_mov_b64 s[48:49], exec\n  s_mov_b64 exec, 1')
    a('  s_waitcnt vmcnt(0)')
    a(f'  buffer_atomic_add v{T+4}, v{T+3}, s[32:35], 0 offen sc0')
    a('  s_waitcnt vmcnt(0)')
    a(f'  v_readfirstlane_b32 s46, v{T+4}')
    a('  s_mov_b64 exec, s[48:49]')
    if stamps:
        a('  s_memrealtime s[54:55]\n  s_getreg_b32 s56, hwreg(HW_REG_XCC_ID)\n  s_waitcnt lgkmcnt(0)')
        a(f'  v_mov_b32 v{KS}, s50\n  v_mov_b32 v{KS+1}, s51\n  v_mov_b32 v{KS+2}, s52\n  v_mov_b32 v{KS+3}, s53')
        a(f'  v_mov_b32 v{KS+4}, s54\n  v_mov_b32 v{KS+5}, s55\n  v_mov_b32 v{KS+6}, s56\n  v_mov_b32 v{KS+7}, 0')
        a(f'  s_lshl_b32 s47, s2, 6\n  s_add_u32 s47, s47, 0x80000\n  v_mov_b32 v{KS+8}, 0')
        a(f'  buffer_store_dwordx4 v[{KS}:{KS+3}], v{KS+8}, s[24:27], s47 offen')
        a(f'  buffer_store_dwordx4 v[{KS+4}:{KS+7}], v{KS+8}, s[24:27], s47 offen offset:16')
    if dbgstamp:
        a('  s_not_b32 s54, s50\n  s_atomic_umax s54, s[32:33], 0\n  s_atomic_umax s52, s[32:33], 4\n  s_not_b32 s55, s52\n  s_atomic_umax s55, s[32:33], 12\n  s_sub_u32 s56, s52, s50\n  s_atomic_add s56, s[32:33], 16\n s_waitcnt lgkmcnt(0)')
    a('  s_cmp_lg_u32 s46, 7\n  s_cbranch_scc1 L_end')
    a('  s_lshl_b32 s45, s39, 13')
    for p in range(8):
        if p==4: a('  s_add_u32 s45, s45, 4096')
        a(f'  buffer_load_dwordx4 v[{R+p*4}:{R+p*4+3}], v{T}, s[24:27], s45 offen offset:{(p&3)*1024} sc1')
    a('  s_waitcnt vmcnt(0)')
    for p in range(1,8):
        for r in range(4): a(f'  v_add_f32 v{R+r}, v{R+r}, v{R+p*4+r}')
    a('  s_nop 0')
    a(f'  v_readlane_b32 s46, v{R}, 32')
    a('  s_nop 1')
    a(f'  v_mov_b32 v{T+1}, s46')
    a(f'  v_add_f32 v{T+1}, 0x358637bd, v{T+1}')
    a(f'  v_rcp_f32 v{T+2}, v{T+1}')
    a('  s_nop 0')
    for r in range(4): a(f'  v_mul_f32 v{R+4+r}, v{R+r}, v{T+2}')
    for r in range(4): a(f'  v_fma_f32 v{R+8+r}, -v{R+4+r}, v{T+1}, v{R+r}')
    for r in range(4): a(f'  v_fma_f32 v{R+4+r}, v{R+8+r}, v{T+2}, v{R+4+r}')
    a(f'  v_cvt_pk_bf16_f32 v{R}, v{R+4}, v{R+5}\n  v_cvt_pk_bf16_f32 v{R+1}, v{R+6}, v{R+7}')
    a(f'  v_and_b32 v{T+3}, 15, v0\n  v_lshlrev_b32 v{T+3}, 4, v{T+3}\n  v_lshrrev_b32 v{T+4}, 4, v0\n  v_lshl_add_u32 v{T+3}, v{T+4}, 3, v{T+3}')
    a('  s_mov_b32 exec_hi, 0')
    a(f'  buffer_store_dwordx2 v[{R}:{R+1}], v{T+3}, s[28:31], s44 offen')
    if stamps:
        a('  s_waitcnt vmcnt(0)\n  s_memrealtime s[54:55]\n  s_waitcnt lgkmcnt(0)')
        a(f'  v_mov_b32 v{KS+4}, s54\n  v_mov_b32 v{KS+5}, s55')
        a(f'  buffer_store_dwordx2 v[{KS+4}:{KS+5}], v{KS+8}, s[24:27], s47 offen offset:32')
    if dbgstamp:
        a('  s_waitcnt vmcnt(0)\n  s_memrealtime s[54:55]\n  s_waitcnt lgkmcnt(0)\n  s_atomic_umax s54, s[32:33], 8\n s_waitcnt lgkmcnt(0)')
    if diaghold:
        a('L_hold:\n  s_memrealtime s[54:55]\n  s_waitcnt lgkmcnt(0)\n  s_sub_u32 s54, s54, s50')
        a(f'  s_cmp_lt_u32 s54, {diaghold}\n  s_cbranch_scc1 L_hold')
    a('L_end:\n  s_endpgm')
    a(f'''.section .rodata,"a"
.p2align 6
.amdhsa_kernel {NAME}
  .amdhsa_next_free_vgpr {acc_off+na}
  .amdhsa_next_free_sgpr 64
  .amdhsa_accum_offset {acc_off}
  .amdhsa_group_segment_fixed_size 0
  .amdhsa_kernarg_size 56
  .amdhsa_user_sgpr_count 2
  .amdhsa_user_sgpr_kernarg_segment_ptr 1
  .amdhsa_system_sgpr_workgroup_id_x 1
  .amdhsa_float_denorm_mode_32 3
.end_amdhsa_kernel
''')
    return '\n'.join(o)
if __name__=='__main__':
    import json
    kw = json.loads(sys.argv[1]) if len(sys.argv)>1 else {}
    print(gen(**kw))
```

```python
import sys
NAME='standalone__linear_kernel_rfa__decode_kernel'
HEAD='''; Kernarg layout for this problem (56 bytes, ptrs only, base s[0:1]):
'''
def gen(NB=4, W=4, lds=90000, stamps=False, pol='nt', dbgstamp=False, pat='A', diaghold=0, diagmin=None, nvforce=0):
    o=[]; a=o.append
    nwg=256
    tiles = 32768*32//16//(nwg*W)
    stride = W*4096
    assert tiles % NB == 0
    VOFK, VOFV = 1, 2
    DM = 4
    AM = 8
    ONE, NEGSEL = 12, 13
    PHIQ = 14
    KS = 16
    T = 32
    PR = 40
    GR = 44
    SQ = 48
    WW = 52
    DEN = 56
    ACC = 60
    AA = 64
    PK = 80
    KB = 84
    nv = KB + NB*16
    OM = 0
    VB = 16
    na = VB + NB*16
    acc_off = (nv+3)//4*4
    a(HEAD+f'; @launch grid=({nwg},1,1) block=({64*W},1,1) lds={lds}')
    a('.amdgcn_target "amdgcn-amd-amdhsa--gfx950"\n.text')
    a(f'.globl {NAME}\n.p2align 8\n.type {NAME},@function\n{NAME}:')
    a(f'  s_cmp_ge_u32 s2, {nwg}\n  s_cbranch_scc1 L_end')
    a('  s_load_dwordx2 s[8:9], s[0:1], 8')
    a('  s_load_dwordx2 s[12:13], s[0:1], 16')
    a('  s_load_dwordx2 s[16:17], s[0:1], 24')
    a('  s_load_dwordx2 s[20:21], s[0:1], 0')
    if stamps or dbgstamp or diaghold: a('  s_memrealtime s[50:51]')
    a('  v_lshrrev_b32 v3, 6, v0')
    a('  v_and_b32 v0, 63, v0')
    a('  v_readfirstlane_b32 s3, v3')
    a(f'  v_and_b32 v{T}, 15, v0')
    a(f'  v_lshrrev_b32 v{T+1}, 4, v0')
    a(f'  v_lshlrev_b32 v{VOFK}, 8, v{T}')
    a(f'  v_lshl_add_u32 v{VOFK}, v{T+1}, 4, v{VOFK}')
    a(f'  v_lshlrev_b32 v{VOFV}, 4, v{T}')
    a(f'  v_lshl_add_u32 v{VOFV}, v{T+1}, 10, v{VOFV}')
    a(f'  v_lshlrev_b32 v3, 4, v{T+1}')
    a('  s_mov_b32 s10, 0x10000000\n  s_mov_b32 s11, 0x20000')
    a('  s_mov_b32 s14, 0x10000000\n  s_mov_b32 s15, 0x20000')
    a('  s_mov_b32 s18, 4096\n  s_mov_b32 s19, 0x20000')
    a('  s_mov_b32 s22, 8192\n  s_mov_b32 s23, 0x20000')
    a('  s_lshr_b32 s39, s2, 3\n  s_lshl_b32 s44, s39, 8')
    if pat=='A':
        a('  s_lshl_b32 s36, s2, 20\n  s_lshl_b32 s37, s3, 12\n  s_add_u32 s36, s36, s37')
    elif pat=='C':
        a('  s_lshl_b32 s36, s39, 23\n  s_and_b32 s37, s2, 7\n  s_lshl_b32 s37, s37, 14\n  s_add_u32 s36, s36, s37\n  s_lshl_b32 s37, s3, 12\n  s_add_u32 s36, s36, s37')
        stride = 128*1024
    elif pat=='F':
        a('  s_lshr_b32 s36, s2, 1\n  s_lshl_b32 s36, s36, 21\n  s_and_b32 s37, s2, 1\n  s_lshl_b32 s37, s37, 14\n  s_add_u32 s36, s36, s37\n  s_lshl_b32 s37, s3, 12\n  s_add_u32 s36, s36, s37')
        stride = 32*1024
    elif pat=='E':
        a('  s_lshl_b32 s36, s39, 23\n  s_and_b32 s37, s2, 1\n  s_lshl_b32 s37, s37, 12\n  s_add_u32 s36, s36, s37\n  s_and_b32 s37, s2, 6\n  s_lshl_b32 s37, s37, 14\n  s_add_u32 s36, s36, s37\n  s_lshl_b32 s37, s3, 13\n  s_add_u32 s36, s36, s37')
        stride = 128*1024
    a('  s_waitcnt lgkmcnt(0)')
    def issueK(b):
        for j in range(4):
            r=KB+b*16+j*4
            a(f'  buffer_load_dwordx4 v[{r}:{r+3}], v{VOFK}, s[8:11], s36 offen offset:{j*64} {pol}')
    def issueV(b):
        for j in range(4):
            r=VB+b*16+j*4
            a(f'  buffer_load_dwordx4 a[{r}:{r+3}], v{VOFV}, s[12:15], s36 offen offset:{j*256} {pol}')
        a(f'  s_add_u32 s36, s36, {stride}')
    for j in range(4):
        a(f'  buffer_load_dwordx4 a[{OM+j*4}:{OM+j*4+3}], v{VOFK}, s[16:19], 0 offen offset:{j*64}')
    for j in range(4):
        a(f'  buffer_load_dwordx4 v[{AA+j*4}:{AA+j*4+3}], v3, s[20:23], s44 offen offset:{j*64}')
    for b in range(NB):
        issueK(b); issueV(b)
    a('  s_load_dwordx2 s[24:25], s[0:1], 48')
    a('  s_load_dwordx2 s[28:29], s[0:1], 32')
    a('  s_load_dwordx2 s[32:33], s[0:1], 40')
    a('  s_mov_b32 s26, 0x100000\n  s_mov_b32 s27, 0x20000')
    a('  s_mov_b32 s30, 8192\n  s_mov_b32 s31, 0x20000')
    a('  s_mov_b32 s34, 256\n  s_mov_b32 s35, 0x20000')
    a('  s_mov_b32 s40, 0x3e9837f0\n  s_mov_b32 s41, 0x3e9837f0\n  s_mov_b32 s42, 0x3fb8aa3b\n  s_mov_b32 s43, 0xffff0000')
    a(f'  v_lshlrev_b32 v{T+2}, 2, v{T+1}')
    a(f'  v_sub_u32 v{T+2}, v{T}, v{T+2}')
    for r in range(4):
        a(f'  v_cmp_eq_u32 vcc, {r}, v{T+2}\n  s_nop 1\n  v_cndmask_b32 v{DM+r}, 0, -1, vcc')
    a(f'  v_and_b32 v{T+3}, 1, v{T}')
    a(f'  v_cmp_eq_u32 vcc, 1, v{T+3}\n  v_mov_b32 v{T+4}, 0xffff\n  v_mov_b32 v{T+5}, s43\n  v_cndmask_b32 v{T+4}, v{T+4}, v{T+5}, vcc')
    a(f'  v_bfe_u32 v{T+3}, v{T}, 1, 2')
    for q in range(4):
        a(f'  v_cmp_eq_u32 vcc, {q}, v{T+3}\n  s_nop 1\n  v_cndmask_b32 v{AM+q}, 0, v{T+4}, vcc')
    a(f'  v_mov_b32 v{ONE}, 1.0')
    a(f'  v_cmp_lt_u32 vcc, 7, v{T}\n  s_nop 1\n  v_cndmask_b32 v{NEGSEL}, 0, -1.0, vcc')
    for r in range(4):
        a(f'  v_mov_b32 v{DEN+r}, 0\n  v_mov_b32 v{ACC+r}, 0')
    def feat(src, dst, fill=None):
        for j in range(4):
            for d in range(4):
                x=src+j*4+d; t=T+2*(d&1)+4*0
                t=T+2*d
                a(f'  v_lshlrev_b32 v{t}, 16, v{x}')
                a(f'  v_and_b32 v{t+1}, s43, v{x}')
            for d in range(4):
                t=T+2*d
                a(f'  v_pk_mul_f32 v[{t}:{t+1}], v[{t}:{t+1}], s[40:41]')
            for d in range(4):
                t=T+2*d
                a(f'  v_cvt_pk_bf16_f32 v{KS+j*4+d}, v{t}, v{t+1}')
            if j>0:
                jj=j-1
                k=KS+jj*4
                a(f'  v_mfma_f32_16x16x32_bf16 v[{GR}:{GR+3}], v[{k}:{k+3}], v[{k}:{k+3}], '+('0' if jj==0 else f'v[{GR}:{GR+3}]'))
                a(f'  v_mfma_f32_16x16x32_bf16 v[{PR}:{PR+3}], a[{OM+jj*4}:{OM+jj*4+3}], v[{k}:{k+3}], '+('0' if jj==0 else f'v[{PR}:{PR+3}]'))
        k=KS+12
        a(f'  v_mfma_f32_16x16x32_bf16 v[{GR}:{GR+3}], v[{k}:{k+3}], v[{k}:{k+3}], v[{GR}:{GR+3}]')
        a(f'  v_mfma_f32_16x16x32_bf16 v[{PR}:{PR+3}], a[{OM+12}:{OM+15}], v[{k}:{k+3}], v[{PR}:{PR+3}]')
        if fill: fill()
        else: a('  s_nop 3')
        a('  s_nop 2')
        a(f'  v_and_b32 v{T}, v{GR}, v{DM}')
        a(f'  v_and_or_b32 v{T}, v{GR+1}, v{DM+1}, v{T}')
        a(f'  v_and_or_b32 v{T}, v{GR+2}, v{DM+2}, v{T}')
        a(f'  v_and_or_b32 v{T}, v{GR+3}, v{DM+3}, v{T}')
        a(f'  v_cvt_pk_bf16_f32 v{PR}, 0, v{PR}')
        a(f'  v_cvt_pk_bf16_f32 v{PR+1}, 0, v{PR+1}')
        a(f'  v_mfma_f32_16x16x4_f32 v[{SQ}:{SQ+3}], v{ONE}, v{T}, 0')
        a(f'  v_cvt_pk_bf16_f32 v{PR+2}, 0, v{PR+2}')
        a(f'  v_cvt_pk_bf16_f32 v{PR+3}, 0, v{PR+3}')
        a('  s_nop 7')
        a(f'  v_cvt_pk_bf16_f32 v{T}, 0, v{SQ}')
        for r in range(4): a(f'  v_fma_f32 v{PR+r}, v{T}, -0.5, v{PR+r}')
        for r in range(4): a(f'  v_cvt_pk_bf16_f32 v{PR+r}, 0, v{PR+r}')
        for r in range(4): a(f'  v_fma_f32 v{PR+r}, v{PR+r}, s42, -2.0')
        for r in range(4): a(f'  v_exp_f32 v{PR+r}, v{PR+r}')
        a('  s_nop 0')
        for r in range(4): a(f'  v_cvt_pk_bf16_f32 v{PR+r}, 0, v{PR+r}')
        for r in range(4): a(f'  v_add_f32 v{PR+r}, 0x358637bd, v{PR+r}')
        a(f'  v_cvt_pk_bf16_f32 v{dst}, v{PR}, v{PR+1}')
        a(f'  v_cvt_pk_bf16_f32 v{dst+1}, v{PR+2}, v{PR+3}')
    if diagmin:
        a('  s_waitcnt lgkmcnt(0)\n  s_cmp_lg_u32 s3, 0\n  s_cbranch_scc1 L_nomin')
        if diagmin=='min': a('  s_not_b32 s57, s50')
        else: a('  s_mov_b32 s57, s50')
        a('  s_atomic_umax s57, s[32:33], 0\n  s_waitcnt lgkmcnt(0)\nL_nomin:')
    a(f'  s_waitcnt vmcnt({NB*8})')
    feat(AA, PHIQ)
    def tile(b, issue, wk, wv):
        a(f'  s_waitcnt vmcnt({wk})')
        feat(KB+b*16, PK, (lambda: issueK(b)) if issue else None)
        a('  s_nop 1')
        a(f'  v_mfma_f32_16x16x16_bf16 v[{WW}:{WW+3}], v[{PK}:{PK+1}], v[{PHIQ}:{PHIQ+1}], 0')
        a(f'  v_mfma_f32_16x16x16_bf16 v[{DEN}:{DEN+3}], v[{PK}:{PK+1}], v[{PHIQ}:{PHIQ+1}], v[{DEN}:{DEN+3}]')
        a('  s_nop 6')
        for r in range(4): a(f'  v_cvt_pk_bf16_f32 v{T+r}, 0, v{WW+r}')
        for r in range(4): a(f'  v_fma_f32 v{T+r}, v{T+r}, v{NEGSEL}, v{WW+r}')
        for r in range(4): a(f'  v_cvt_pk_bf16_f32 v{T+r}, v{T+r}, v{T+r}')
        for r in range(4):
            for q in range(4):
                a(f'  v_and_b32 v{AA+r*4+q}, v{T+r}, v{AM+q}')
        a(f'  s_waitcnt vmcnt({wv})')
        a('  s_nop 0')
        for r in range(4):
            vb=VB+b*16+r*4
            a(f'  v_mfma_f32_16x16x32_bf16 v[{ACC}:{ACC+3}], v[{AA+r*4}:{AA+r*4+3}], a[{vb}:{vb+3}], v[{ACC}:{ACC+3}]')
        if issue: issueV(b)
    a(f'  s_mov_b32 s38, {tiles//NB-1}')
    a('L_loop:')
    for b in range(NB):
        tile(b, True, NB*8-4, NB*8-4)
    a('  s_sub_u32 s38, s38, 1\n  s_cmp_lg_u32 s38, 0\n  s_cbranch_scc1 L_loop')
    for b in range(NB):
        tile(b, False, (NB-b)*8-4, (NB-b)*8-8)
    if stamps or dbgstamp: a('  s_memrealtime s[52:53]')
    a('  s_nop 7')
    a(f'  v_add_f32 v{DEN}, v{DEN}, v{DEN+1}\n  v_add_f32 v{DEN+2}, v{DEN+2}, v{DEN+3}')
    a(f'  v_lshlrev_b32 v{T}, 4, v0')
    a(f'  s_lshl_b32 s45, s3, 10')
    a(f'  v_add_f32 v{DEN}, v{DEN}, v{DEN+2}')
    a(f'  v_add_u32 v{T+1}, s45, v{T}')
    a(f'  v_lshrrev_b32 v{T+2}, 4, v0\n  s_lshl_b32 s45, s3, 2\n  v_add_lshl_u32 v{T+2}, v{T+2}, s45, 2')
    a(f'  ds_write_b128 v{T+1}, v[{ACC}:{ACC+3}]')
    a(f'  ds_write_b32 v{T+2}, v{DEN} offset:{W*1024}')
    a('  s_waitcnt lgkmcnt(0)\n  s_barrier')
    a('  s_cmp_lg_u32 s3, 0\n  s_cbranch_scc1 L_end')
    a(f'  v_and_b32 v{T+1}, 0x1ff, v{T}')
    a(f'  v_mov_b32 v{T+2}, 0')
    R=KB
    for i in range(2*W): a(f'  ds_read_b128 v[{R+i*4}:{R+i*4+3}], v{T+1} offset:{i*512}')
    D=AA
    for i in range(W): a(f'  ds_read_b128 v[{D+i*4}:{D+i*4+3}], v{T+2} offset:{W*1024+i*16}')
    a('  s_waitcnt lgkmcnt(0)')
    for i in range(1,2*W):
        for r in range(4): a(f'  v_add_f32 v{R+r}, v{R+r}, v{R+i*4+r}')
    for i in range(1,4*W): a(f'  v_add_f32 v{D}, v{D}, v{D+i}')
    a(f'  v_cmp_lt_u32 vcc, 31, v0\n  s_lshl_b32 s45, s2, 10\n  s_nop 0')
    for r in range(4): a(f'  v_cndmask_b32 v{R+r}, v{R+r}, v{D}, vcc')
    a(f'  buffer_store_dwordx4 v[{R}:{R+3}], v{T}, s[24:27], s45 offen sc1')
    a(f'  s_lshl_b32 s46, s39, 2\n  s_add_u32 s46, s46, 128\n  v_mov_b32 v{T+3}, s46\n  v_mov_b32 v{T+4}, 1')
    a('  s_mov_b64 s[48:49], exec\n  s_mov_b64 exec, 1')
    a('  s_waitcnt vmcnt(0)')
    a(f'  buffer_atomic_add v{T+4}, v{T+3}, s[32:35], 0 offen sc0')
    a('  s_waitcnt vmcnt(0)')
    a(f'  v_readfirstlane_b32 s46, v{T+4}')
    a('  s_mov_b64 exec, s[48:49]')
    if stamps:
        a('  s_memrealtime s[54:55]\n  s_getreg_b32 s56, hwreg(HW_REG_XCC_ID)\n  s_waitcnt lgkmcnt(0)')
        a(f'  v_mov_b32 v{KS}, s50\n  v_mov_b32 v{KS+1}, s51\n  v_mov_b32 v{KS+2}, s52\n  v_mov_b32 v{KS+3}, s53')
        a(f'  v_mov_b32 v{KS+4}, s54\n  v_mov_b32 v{KS+5}, s55\n  v_mov_b32 v{KS+6}, s56\n  v_mov_b32 v{KS+7}, 0')
        a(f'  s_lshl_b32 s47, s2, 6\n  s_add_u32 s47, s47, 0x80000\n  v_mov_b32 v{KS+8}, 0')
        a(f'  buffer_store_dwordx4 v[{KS}:{KS+3}], v{KS+8}, s[24:27], s47 offen')
        a(f'  buffer_store_dwordx4 v[{KS+4}:{KS+7}], v{KS+8}, s[24:27], s47 offen offset:16')
    if dbgstamp:
        a('  s_not_b32 s54, s50\n  s_atomic_umax s54, s[32:33], 0\n  s_atomic_umax s52, s[32:33], 4\n  s_not_b32 s55, s52\n  s_atomic_umax s55, s[32:33], 12\n  s_sub_u32 s56, s52, s50\n  s_atomic_add s56, s[32:33], 16\n s_waitcnt lgkmcnt(0)')
    a('  s_cmp_lg_u32 s46, 7\n  s_cbranch_scc1 L_end')
    a('  s_lshl_b32 s45, s39, 13')
    for p in range(8):
        if p==4: a('  s_add_u32 s45, s45, 4096')
        a(f'  buffer_load_dwordx4 v[{R+p*4}:{R+p*4+3}], v{T}, s[24:27], s45 offen offset:{(p&3)*1024} sc1')
    a('  s_waitcnt vmcnt(0)')
    for p in range(1,8):
        for r in range(4): a(f'  v_add_f32 v{R+r}, v{R+r}, v{R+p*4+r}')
    a('  s_nop 0')
    a(f'  v_readlane_b32 s46, v{R}, 32')
    a('  s_nop 1')
    a(f'  v_mov_b32 v{T+1}, s46')
    a(f'  v_add_f32 v{T+1}, 0x358637bd, v{T+1}')
    a(f'  v_rcp_f32 v{T+2}, v{T+1}')
    a('  s_nop 0')
    for r in range(4): a(f'  v_mul_f32 v{R+4+r}, v{R+r}, v{T+2}')
    for r in range(4): a(f'  v_fma_f32 v{R+8+r}, -v{R+4+r}, v{T+1}, v{R+r}')
    for r in range(4): a(f'  v_fma_f32 v{R+4+r}, v{R+8+r}, v{T+2}, v{R+4+r}')
    a(f'  v_cvt_pk_bf16_f32 v{R}, v{R+4}, v{R+5}\n  v_cvt_pk_bf16_f32 v{R+1}, v{R+6}, v{R+7}')
    a(f'  v_and_b32 v{T+3}, 15, v0\n  v_lshlrev_b32 v{T+3}, 4, v{T+3}\n  v_lshrrev_b32 v{T+4}, 4, v0\n  v_lshl_add_u32 v{T+3}, v{T+4}, 3, v{T+3}')
    a('  s_mov_b32 exec_hi, 0')
    a(f'  buffer_store_dwordx2 v[{R}:{R+1}], v{T+3}, s[28:31], s44 offen')
    if stamps:
        a('  s_waitcnt vmcnt(0)\n  s_memrealtime s[54:55]\n  s_waitcnt lgkmcnt(0)')
        a(f'  v_mov_b32 v{KS+4}, s54\n  v_mov_b32 v{KS+5}, s55')
        a(f'  buffer_store_dwordx2 v[{KS+4}:{KS+5}], v{KS+8}, s[24:27], s47 offen offset:32')
    if dbgstamp:
        a('  s_waitcnt vmcnt(0)\n  s_memrealtime s[54:55]\n  s_waitcnt lgkmcnt(0)\n  s_atomic_umax s54, s[32:33], 8\n s_waitcnt lgkmcnt(0)')
    if diaghold:
        if diagmin:
            a('  s_mov_b32 s50, 0\n  s_atomic_umax s50, s[32:33], 0 glc\n  s_waitcnt lgkmcnt(0)')
            if diagmin=='min': a('  s_not_b32 s50, s50')
        a('L_hold:\n  s_memrealtime s[54:55]\n  s_waitcnt lgkmcnt(0)\n  s_sub_u32 s54, s54, s50')
        a(f'  s_cmp_lt_u32 s54, {diaghold}\n  s_cbranch_scc1 L_hold')
    a('L_end:\n  s_endpgm')
    a(f'''.section .rodata,"a"
.p2align 6
.amdhsa_kernel {NAME}
  .amdhsa_next_free_vgpr {max(nvforce,acc_off+na)}
  .amdhsa_next_free_sgpr 64
  .amdhsa_accum_offset {acc_off}
  .amdhsa_group_segment_fixed_size 0
  .amdhsa_kernarg_size 56
  .amdhsa_user_sgpr_count 2
  .amdhsa_user_sgpr_kernarg_segment_ptr 1
  .amdhsa_system_sgpr_workgroup_id_x 1
  .amdhsa_float_denorm_mode_32 3
.end_amdhsa_kernel
''')
    return '\n'.join(o)
if __name__=='__main__':
    import json
    kw = json.loads(sys.argv[1]) if len(sys.argv)>1 else {}
    print(gen(**kw))
```

```python
import sys
NAME='standalone__linear_kernel_rfa__decode_kernel'
HEAD='''; Kernarg layout for this problem (56 bytes, ptrs only, base s[0:1]):
'''
CTR=0x40000; CTRSTRIDE=4352; NONCE=0x3ff00+0x40000
def gen(sizes=(1,1,1,1), lds=90000, stamps=False, pol='nt', CHK=30, initwg=0, ldpol='sc1', mimic=True, warm=True, outpol='', bar=0, pro=0):
    o=[]; a=o.append
    NB=2; W=4; nwg=256
    sizes=list(sizes)
    S=64-sum(sizes); R=len(sizes)
    szp=0; pre=0; prep=0
    for r,s in enumerate(sizes): szp|=s<<(4*r); prep|=pre<<(4*r); pre+=s
    RS=32768
    VOFK, VOFV = 1, 2
    DM=4; AM=8; ONE,NEGSEL=12,13; PHIQ=14; KS=16; T=32; PR=40; GR=44; SQ=48; WW=52; DEN=56; ACC=60; AA=64; PK=80; TK=82
    EA=84; KB=92; nv=KB+NB*16
    OM=0; VB=16; na=VB+NB*16
    acc_off=(nv+3)//4*4
    LT=8192
    a(HEAD+f'; @launch grid=({nwg},1,1) block=({64*W},1,1) lds={lds}')
    a('.amdgcn_target "amdgcn-amd-amdhsa--gfx950"\n.text')
    a(f'.globl {NAME}\n.p2align 8\n.type {NAME},@function\n{NAME}:')
    a('  s_load_dwordx2 s[8:9], s[0:1], 8')
    a('  s_load_dwordx2 s[12:13], s[0:1], 16')
    a(f'  s_cmp_ge_u32 s2, {nwg}\n  s_cbranch_scc1 L_end')
    if stamps: a('  s_memrealtime s[70:71]')
    a('  v_lshrrev_b32 v3, 6, v0')
    a('  v_and_b32 v0, 63, v0')
    a('  v_readfirstlane_b32 s3, v3')
    a(f'  v_and_b32 v{T}, 15, v0')
    a(f'  v_lshrrev_b32 v{T+1}, 4, v0')
    a(f'  v_lshlrev_b32 v{VOFK}, 8, v{T}')
    a(f'  v_lshl_add_u32 v{VOFK}, v{T+1}, 4, v{VOFK}')
    a(f'  v_lshlrev_b32 v{VOFV}, 4, v{T}')
    a(f'  v_lshl_add_u32 v{VOFV}, v{T+1}, 10, v{VOFV}')
    a('  s_mov_b32 s10, 0x10000000\n  s_mov_b32 s11, 0x20000')
    a('  s_mov_b32 s14, 0x10000000\n  s_mov_b32 s15, 0x20000')
    a('  s_lshr_b32 s36, s2, 1\n  s_lshl_b32 s36, s36, 21\n  s_and_b32 s37, s2, 1\n  s_lshl_b32 s37, s37, 14\n  s_add_u32 s36, s36, s37')
    a('  s_lshl_b32 s57, s3, 12\n  s_add_u32 s36, s36, s57')
    a('  s_waitcnt lgkmcnt(0)')
    def issueK(b):
        for j in range(4):
            r=KB+b*16+j*4
            a(f'  buffer_load_dwordx4 v[{r}:{r+3}], v{VOFK}, s[8:11], s36 offen offset:{j*64} {pol}')
    def issueV(b):
        for j in range(4):
            r=VB+b*16+j*4
            a(f'  buffer_load_dwordx4 a[{r}:{r+3}], v{VOFV}, s[12:15], s36 offen offset:{j*256} {pol}')
    def omq():
        a('  s_mov_b32 s18, 4096\n  s_mov_b32 s19, 0x20000')
        a('  s_mov_b32 s22, 8192\n  s_mov_b32 s23, 0x20000')
        a('  s_lshr_b32 s39, s2, 3\n  s_lshl_b32 s44, s39, 8')
        a(f'  v_lshlrev_b32 v3, 4, v{T+1}')
        a('  s_waitcnt lgkmcnt(0)')
        for j in range(4):
            a(f'  buffer_load_dwordx4 a[{OM+j*4}:{OM+j*4+3}], v{VOFK}, s[16:19], 0 offen offset:{j*64}')
        for j in range(4):
            a(f'  buffer_load_dwordx4 v[{AA+j*4}:{AA+j*4+3}], v3, s[20:23], s44 offen offset:{j*64}')
    def ptrs():
        a('  s_load_dwordx2 s[16:17], s[0:1], 24')
        a('  s_load_dwordx2 s[20:21], s[0:1], 0')
        a('  s_load_dwordx2 s[24:25], s[0:1], 48')
        a('  s_load_dwordx2 s[28:29], s[0:1], 32')
        a('  s_load_dwordx2 s[32:33], s[0:1], 40')
    if pro==0:
        issueK(0); ptrs(); issueV(0); a(f'  s_add_u32 s36, s36, {RS}'); omq()
    elif pro==1:
        ptrs(); omq(); issueK(0); issueV(0); a(f'  s_add_u32 s36, s36, {RS}')
    elif pro==2:
        ptrs(); issueK(0); omq(); issueV(0); a(f'  s_add_u32 s36, s36, {RS}')
    issueK(1); issueV(1)
    a('  s_mov_b32 s26, 0x100000\n  s_mov_b32 s27, 0x20000')
    a('  s_mov_b32 s30, 8192\n  s_mov_b32 s31, 0x20000')
    a('  s_mov_b32 s34, 256\n  s_mov_b32 s35, 0x20000')
    a('  s_mov_b32 s40, 0x3e9837f0\n  s_mov_b32 s41, 0x3e9837f0\n  s_mov_b32 s42, 0x3fb8aa3b\n  s_mov_b32 s43, 0xffff0000')
    a(f'  v_lshlrev_b32 v{T+2}, 2, v{T+1}')
    a(f'  v_sub_u32 v{T+2}, v{T}, v{T+2}')
    for r in range(4):
        a(f'  v_cmp_eq_u32 vcc, {r}, v{T+2}\n  s_nop 1\n  v_cndmask_b32 v{DM+r}, 0, -1, vcc')
    a(f'  v_and_b32 v{T+3}, 1, v{T}')
    a(f'  v_cmp_eq_u32 vcc, 1, v{T+3}\n  v_mov_b32 v{T+4}, 0xffff\n  v_mov_b32 v{T+5}, s43\n  v_cndmask_b32 v{T+4}, v{T+4}, v{T+5}, vcc')
    a(f'  v_bfe_u32 v{T+3}, v{T}, 1, 2')
    for q in range(4):
        a(f'  v_cmp_eq_u32 vcc, {q}, v{T+3}\n  s_nop 1\n  v_cndmask_b32 v{AM+q}, 0, v{T+4}, vcc')
    a(f'  v_mov_b32 v{ONE}, 1.0')
    a(f'  v_cmp_lt_u32 vcc, 7, v{T}\n  s_nop 1\n  v_cndmask_b32 v{NEGSEL}, 0, -1.0, vcc')
    for r in range(4):
        a(f'  v_mov_b32 v{DEN+r}, 0\n  v_mov_b32 v{ACC+r}, 0')
    a(f'  v_lshlrev_b32 v{EA}, 5, v{T}\n  v_and_b32 v{T+2}, 1, v{T+1}\n  v_lshl_add_u32 v{EA}, v{T+2}, 4, v{EA}')
    a(f'  v_lshrrev_b32 v{T+2}, 5, v0\n  s_lshl_b32 s45, s3, 1\n  v_add_lshl_u32 v{T+2}, v{T+2}, s45, 9\n  v_add_u32 v{EA}, v{EA}, v{T+2}')
    a(f'  s_lshl_b32 s45, s3, 2\n  v_add_lshl_u32 v{EA+1}, v{T+1}, s45, 2')
    a(f'  v_lshlrev_b32 v{EA+2}, 3, v0\n  v_lshlrev_b32 v{EA+3}, 4, v0\n  v_mov_b32 v{EA+4}, 0\n  v_lshlrev_b32 v{EA+5}, 2, v0')
    a('  s_lshl_b32 s80, s2, 10')
    for k in range(1,8): a(f'  s_xor_b32 s{80+k}, s80, {k*1024}')
    a(f'  s_add_u32 s57, s57, {S*RS-RS}\n  s_lshl_b32 s45, s39, 23\n  s_add_u32 s57, s57, s45')
    a(f'  s_mov_b32 s59, {S-NB}\n  s_mov_b32 s60, 0\n  s_mov_b32 s61, {LT}')
    a(f'  s_mul_i32 s45, s39, {CTRSTRIDE}\n  s_add_u32 s45, s45, {CTR}\n  s_add_u32 s64, s24, s45\n  s_addc_u32 s65, s25, 0')
    a(f'  s_mov_b32 s66, {szp}\n  s_mov_b32 s67, {prep}')
    if stamps: a('  s_mov_b32 s76, 2')
    a(f'  s_cmp_eq_u32 s2, {initwg}\n  s_cselect_b32 s45, s3, 1\n  s_cmp_eq_u32 s45, 0\n  s_cbranch_scc0 L_noinit')
    a('  s_getpc_b64 s[46:47]\n  s_branch L_init')
    a('L_noinit:')
    if warm:
        a('  s_mov_b64 exec, 0\n  s_branch L_h0\nL_hret:\n  s_mov_b64 exec, -1')
    def feat(src, dst, fill=None):
        for j in range(4):
            for d in range(4):
                x=src+j*4+d; t=T+2*d
                a(f'  v_lshlrev_b32 v{t}, 16, v{x}')
                a(f'  v_and_b32 v{t+1}, s43, v{x}')
            for d in range(4):
                t=T+2*d
                a(f'  v_pk_mul_f32 v[{t}:{t+1}], v[{t}:{t+1}], s[40:41]')
            for d in range(4):
                t=T+2*d
                a(f'  v_cvt_pk_bf16_f32 v{KS+j*4+d}, v{t}, v{t+1}')
            if j>0:
                jj=j-1; k=KS+jj*4
                a(f'  v_mfma_f32_16x16x32_bf16 v[{GR}:{GR+3}], v[{k}:{k+3}], v[{k}:{k+3}], '+('0' if jj==0 else f'v[{GR}:{GR+3}]'))
                a(f'  v_mfma_f32_16x16x32_bf16 v[{PR}:{PR+3}], a[{OM+jj*4}:{OM+jj*4+3}], v[{k}:{k+3}], '+('0' if jj==0 else f'v[{PR}:{PR+3}]'))
        k=KS+12
        a(f'  v_mfma_f32_16x16x32_bf16 v[{GR}:{GR+3}], v[{k}:{k+3}], v[{k}:{k+3}], v[{GR}:{GR+3}]')
        a(f'  v_mfma_f32_16x16x32_bf16 v[{PR}:{PR+3}], a[{OM+12}:{OM+15}], v[{k}:{k+3}], v[{PR}:{PR+3}]')
        if fill: fill()
        else: a('  s_nop 1')
        a('  s_nop 4')
        a(f'  v_and_b32 v{T}, v{GR}, v{DM}')
        a(f'  v_and_or_b32 v{T}, v{GR+1}, v{DM+1}, v{T}')
        a(f'  v_and_or_b32 v{T}, v{GR+2}, v{DM+2}, v{T}')
        a(f'  v_and_or_b32 v{T}, v{GR+3}, v{DM+3}, v{T}')
        a(f'  v_cvt_pk_bf16_f32 v{PR}, 0, v{PR}')
        a(f'  v_cvt_pk_bf16_f32 v{PR+1}, 0, v{PR+1}')
        a(f'  v_mfma_f32_16x16x4_f32 v[{SQ}:{SQ+3}], v{ONE}, v{T}, 0')
        a(f'  v_cvt_pk_bf16_f32 v{PR+2}, 0, v{PR+2}')
        a(f'  v_cvt_pk_bf16_f32 v{PR+3}, 0, v{PR+3}')
        a('  s_nop 7')
        a(f'  v_cvt_pk_bf16_f32 v{T}, 0, v{SQ}')
        for r in range(4): a(f'  v_fma_f32 v{PR+r}, v{T}, -0.5, v{PR+r}')
        for r in range(4): a(f'  v_cvt_pk_bf16_f32 v{PR+r}, 0, v{PR+r}')
        for r in range(4): a(f'  v_fma_f32 v{PR+r}, v{PR+r}, s42, -2.0')
        for r in range(4): a(f'  v_exp_f32 v{PR+r}, v{PR+r}')
        a('  s_nop 0')
        for r in range(4): a(f'  v_cvt_pk_bf16_f32 v{PR+r}, 0, v{PR+r}')
        for r in range(4): a(f'  v_add_f32 v{PR+r}, 0x358637bd, v{PR+r}')
        a(f'  v_cvt_pk_bf16_f32 v{dst}, v{PR}, v{PR+1}')
        a(f'  v_cvt_pk_bf16_f32 v{dst+1}, v{PR+2}, v{PR+3}')
    a(f'  s_waitcnt vmcnt({[8,16,12][pro]})')
    feat(AA, PHIQ)
    def tile(b):
        a('  s_waitcnt vmcnt(12)')
        a(f'  s_cmp_eq_u32 s60, 0\n  s_cbranch_scc1 L_kw{b}\n  s_waitcnt vmcnt(4)\nL_kw{b}:')
        def sched():
            a(f'  s_cmp_lg_u32 s59, 0\n  s_cbranch_scc1 L_sb{b}')
            a(f'  s_cmp_lg_u32 s60, 0\n  s_cbranch_scc1 L_dr{b}')
            if R:
                a(f'  s_xor_b32 s61, s61, 4\n  v_mov_b32 v{TK}, s61')
                a(f'  s_cmp_lg_u32 s3, 0\n  s_cbranch_scc1 L_ot{b}')
                a(f'  s_waitcnt lgkmcnt(0)\n  v_mov_b32 v{TK+1}, s58')
                a(f'  ds_write_b32 v{TK}, v{TK+1}\n  s_waitcnt lgkmcnt(0)\n  s_barrier\n  s_branch L_jn{b}')
                a(f'L_ot{b}:\n  s_barrier\n  ds_read_b32 v{TK+1}, v{TK}\n  s_waitcnt lgkmcnt(0)\n  v_readfirstlane_b32 s58, v{TK+1}')
                a(f'L_jn{b}:')
                a(f'  s_cmp_lt_u32 s58, {R*8}\n  s_cbranch_scc1 L_hv{b}')
            a(f'L_dr{b}:\n  s_add_u32 s60, s60, 1\n  s_branch L_nk{b}')
            if R:
                a(f'L_hv{b}:')
                a('  s_lshr_b32 s45, s58, 3\n  s_lshl_b32 s45, s45, 2\n  s_lshr_b32 s59, s66, s45\n  s_and_b32 s59, s59, 15\n  s_lshr_b32 s45, s67, s45\n  s_and_b32 s45, s45, 15')
                a('  s_lshl_b32 s36, s45, 15\n  s_add_u32 s36, s36, s57')
                a('  s_bfe_u32 s45, s58, 0x20001\n  s_lshl_b32 s45, s45, 21\n  s_add_u32 s36, s36, s45')
                a('  s_and_b32 s45, s58, 1\n  s_lshl_b32 s45, s45, 14\n  s_add_u32 s36, s36, s45')
            if bar==1 or (bar==3 and b==0): a(f'  s_branch L_st{b}\nL_sb{b}:\n  s_barrier')
            else: a(f'L_sb{b}:')
            a(f'L_st{b}:')
            a(f'  s_add_u32 s36, s36, {RS}\n  s_sub_u32 s59, s59, 1')
            issueK(b)
            if stamps: a('  s_add_u32 s76, s76, 1')
            a(f'  s_cmp_lg_u32 s3, 0\n  s_cbranch_scc1 L_nk{b}')
            if (S-NB-CHK-1) % 2 == b % 2:
                a(f'  s_cmp_eq_u32 s59, {CHK}\n  s_cbranch_scc0 L_nc{b}')
                a('  s_load_dwordx2 s[62:63], s[32:33], 8')
                a(f'L_nc{b}:')
            else:
                a(f'  s_cmp_eq_u32 s59, {CHK-1}\n  s_cbranch_scc0 L_nc{b}')
                a(f'  s_waitcnt lgkmcnt(0)\n  s_cmp_eq_u32 s63, 1\n  s_cbranch_scc1 L_nc{b}')
                a('  s_getpc_b64 s[46:47]\n  s_branch L_init')
                a('  s_mov_b32 s45, 0x100000')
                a(f'L_sp{b}:\n  s_mov_b64 s[62:63], 0\n  s_atomic_add_x2 s[62:63], s[32:33], 8 glc\n  s_waitcnt lgkmcnt(0)')
                a(f'  s_cmp_eq_u32 s63, 1\n  s_cbranch_scc1 L_nc{b}\n  s_sub_u32 s45, s45, 1\n  s_cbranch_scc0 L_sp{b}')
                a(f'L_nc{b}:')
            if R:
                a(f'  s_cmp_eq_u32 s59, 0\n  s_cbranch_scc0 L_nk{b}')
                a('  s_mov_b32 s58, 1\n  s_atomic_add s58, s[64:65], 0 glc')
            a(f'L_nk{b}:')
        feat(KB+b*16, PK, sched)
        a('  s_nop 1')
        a(f'  v_mfma_f32_16x16x16_bf16 v[{WW}:{WW+3}], v[{PK}:{PK+1}], v[{PHIQ}:{PHIQ+1}], 0')
        a(f'  v_mfma_f32_16x16x16_bf16 v[{DEN}:{DEN+3}], v[{PK}:{PK+1}], v[{PHIQ}:{PHIQ+1}], v[{DEN}:{DEN+3}]')
        a('  s_nop 6')
        for r in range(4): a(f'  v_cvt_pk_bf16_f32 v{T+r}, 0, v{WW+r}')
        for r in range(4): a(f'  v_fma_f32 v{T+r}, v{T+r}, v{NEGSEL}, v{WW+r}')
        for r in range(4): a(f'  v_cvt_pk_bf16_f32 v{T+r}, v{T+r}, v{T+r}')
        for r in range(4):
            for q in range(4):
                a(f'  v_and_b32 v{AA+r*4+q}, v{T+r}, v{AM+q}')
        def pv():
            for r in range(4):
                vb=VB+b*16+r*4
                a(f'  v_mfma_f32_16x16x32_bf16 v[{ACC}:{ACC+3}], v[{AA+r*4}:{AA+r*4+3}], a[{vb}:{vb+3}], v[{ACC}:{ACC+3}]')
        a('  s_waitcnt vmcnt(12)')
        a(f'  s_cmp_eq_u32 s60, 0\n  s_cbranch_scc1 L_vw{b}\n  s_waitcnt vmcnt(8)')
        a(f'  s_cmp_eq_u32 s60, 1\n  s_cbranch_scc1 L_vw{b}\n  s_waitcnt vmcnt(0)\nL_vw{b}:')
        pv()
        a(f'  s_cmp_eq_u32 s60, 2\n  s_cbranch_scc1 L_done')
        a(f'  s_cmp_eq_u32 s60, 0\n  s_cbranch_scc0 L_nv{b}')
        issueV(b)
        a(f'L_nv{b}:')
    if bar==2: a('  s_barrier')
    a('L_loop:')
    tile(0); tile(1)
    a('  s_branch L_loop')
    a('L_done:')
    if stamps: a('  s_memrealtime s[72:73]')
    hop=[0]
    def H():
        if warm:
            a(f'L_h{hop[0]}:\n  s_cbranch_execz L_h{hop[0]+1}'); hop[0]+=1
    H()
    a(f'  v_add_f32 v{DEN}, v{DEN}, v{DEN+1}\n  v_add_f32 v{DEN+2}, v{DEN+2}, v{DEN+3}')
    a(f'  v_add_f32 v{DEN}, v{DEN}, v{DEN+2}')
    a('  s_mov_b32 s55, 1')
    a(f'  ds_write_b32 v{EA+1}, v{DEN} offset:4096')
    a('  s_nop 1')
    a(f'  ds_write_b128 v{EA}, v[{ACC}:{ACC+3}]')
    a('  s_waitcnt lgkmcnt(0)\n  s_barrier')
    a('  s_cmp_lg_u32 s3, 0\n  s_cbranch_scc1 L_end')
    X=KS; D=AA; R0=KB
    H()
    for i in range(8): a(f'  ds_read_b64 v[{X+i*2}:{X+i*2+1}], v{EA+2} offset:{i*512}')
    H()
    for i in range(4): a(f'  ds_read_b128 v[{D+i*4}:{D+i*4+3}], v{EA+4} offset:{4096+i*16}')
    a('  s_waitcnt lgkmcnt(4)')
    def pk(d,x,y): a(f'  v_pk_add_f32 v[{d}:{d+1}], v[{x}:{x+1}], v[{y}:{y+1}]')
    for i in range(4): pk(X+i*4, X+i*4, X+i*4+2)
    H()
    pk(X,X,X+4); pk(X+8,X+8,X+12)
    a('  s_waitcnt lgkmcnt(0)')
    for i in range(4): pk(D+i*4, D+i*4, D+i*4+2)
    pk(PR,X,X+8)
    H()
    pk(D,D,D+4); pk(D+8,D+8,D+12); pk(D,D,D+8)
    a(f'  v_mov_b32 v{PR+3}, s62')
    a(f'  v_add_f32 v{PR+2}, v{D}, v{D+1}')
    a(f'  buffer_store_dwordx4 v[{PR}:{PR+3}], v{EA+3}, s[24:27], s80 offen sc1')
    a('  s_atomic_add s55, s[64:65], 4 glc')
    a('  s_mov_b32 s49, 0')
    H()
    a('L_chk:')
    for k in range(1,8):
        a(f'  buffer_load_dwordx4 v[{R0+k*4}:{R0+k*4+3}], v{EA+3}, s[24:27], s{80+k} offen {ldpol}')
    H()
    a('  s_waitcnt lgkmcnt(0)')
    if stamps: a('  s_mov_b64 s[78:79], 0\n  s_memrealtime s[74:75]\n  s_cmp_lg_u32 s55, 7\n  s_cbranch_scc1 L_stamp')
    else: a('  s_cmp_lg_u32 s55, 7\n  s_cbranch_scc1 L_end')
    a('  s_waitcnt vmcnt(0)')
    if stamps: a('  s_waitcnt lgkmcnt(0)\n  s_memrealtime s[74:75]')
    a(f'  v_xor_b32 v{T+3}, v{PR+3}, v{R0+7}')
    for k in range(2,8):
        a(f'  v_bitop3_b32 v{T+3}, v{T+3}, v{R0+k*4+3}, v{PR+3} bitop3:0xf6')
    H()
    a(f'  v_cmp_ne_u32 vcc, 0, v{T+3}')
    pk(R0, PR, R0+4); a(f'  v_add_f32 v{R0+2}, v{PR+2}, v{R0+6}')
    for i in range(1,4):
        pk(R0+i*8, R0+i*8, R0+i*8+4); a(f'  v_add_f32 v{R0+i*8+2}, v{R0+i*8+2}, v{R0+i*8+6}')
    a('  s_cbranch_vccnz L_again')
    a('L_fin:')
    H()
    a(f'  v_add_f32 v{R0+2}, v{R0+2}, v{R0+10}\n  v_add_f32 v{R0+18}, v{R0+18}, v{R0+26}')
    pk(R0, R0, R0+8)
    a(f'  v_add_f32 v{R0+2}, v{R0+2}, v{R0+18}')
    pk(R0+16, R0+16, R0+24)
    a(f'  v_add_f32 v{R0+2}, 0x358637bd, v{R0+2}')
    a(f'  v_rcp_f32 v{R0+3}, v{R0+2}')
    pk(R0,R0,R0+16)
    H()
    for r in range(2): a(f'  v_mul_f32 v{R0+4+r}, v{R0+r}, v{R0+3}')
    for r in range(2): a(f'  v_fma_f32 v{R0+6+r}, -v{R0+4+r}, v{R0+2}, v{R0+r}')
    for r in range(2): a(f'  v_fma_f32 v{R0+4+r}, v{R0+6+r}, v{R0+3}, v{R0+4+r}')
    a(f'  v_cvt_pk_bf16_f32 v{R0}, v{R0+4}, v{R0+5}')
    if warm: a(f'L_h{hop[0]}:\n  s_cbranch_execz L_hret')
    a(f'  buffer_store_dword v{R0}, v{EA+5}, s[28:31], s44 offen {outpol}')
    if stamps:
        a('  s_waitcnt vmcnt(0)\n  s_memrealtime s[78:79]')
        a('L_stamp:\n  s_getreg_b32 s77, hwreg(HW_REG_XCC_ID)\n  s_waitcnt lgkmcnt(0)')
        a(f'  v_mov_b32 v{KS}, s70\n  v_mov_b32 v{KS+1}, s71\n  v_mov_b32 v{KS+2}, s72\n  v_mov_b32 v{KS+3}, s73')
        a(f'  v_mov_b32 v{KS+4}, s74\n  v_mov_b32 v{KS+5}, s75\n  v_mov_b32 v{KS+6}, s77\n  v_mov_b32 v{KS+7}, s76')
        a(f'  v_mov_b32 v{KS+8}, s78\n  v_mov_b32 v{KS+9}, s79\n  v_mov_b32 v{KS+10}, s49\n  v_mov_b32 v{KS+11}, 0')
        a(f'  s_lshl_b32 s47, s2, 6\n  s_add_u32 s47, s47, 0x80000\n  v_mov_b32 v{KS+12}, 0\n  s_mov_b64 exec, 1')
        for i in range(3): a(f'  buffer_store_dwordx4 v[{KS+4*i}:{KS+4*i+3}], v{KS+12}, s[24:27], s47 offen offset:{16*i}')
    a('L_end:\n  s_endpgm')
    a('L_again:\n  s_add_u32 s49, s49, 1\n  s_cmp_lt_u32 s49, 0x100000\n  s_cbranch_scc1 L_chk\n  s_branch L_fin')
    a('L_init:')
    a('  s_mov_b32 s45, 1\n  s_atomic_add s45, s[32:33], 0 glc\n  s_waitcnt lgkmcnt(0)')
    a('  s_cmp_eq_u32 s45, 0\n  s_cbranch_scc0 L_iret')
    a(f'  s_mov_b32 s45, 1\n  s_mov_b32 s50, {NONCE}\n  s_atomic_add s45, s[24:25], s50 glc')
    a(f'  s_movk_i32 s48, {CTRSTRIDE}\n  v_mul_lo_u32 v{TK}, v0, s48\n  v_mov_b32 v{T}, 0\n  v_mov_b32 v{T+1}, 0\n  s_mov_b32 s48, {CTR}')
    a(f'  s_mov_b32 exec_hi, 0\n  buffer_store_dwordx2 v[{T}:{T+1}], v{TK}, s[24:27], s48 offen sc1\n  s_mov_b32 exec_hi, -1')
    a('  s_waitcnt vmcnt(0) lgkmcnt(0)')
    a('  s_add_u32 s48, s45, 1\n  s_mov_b32 s49, 1\n  s_atomic_swap_x2 s[48:49], s[32:33], 8 glc\n  s_waitcnt lgkmcnt(0)')
    a('L_iret:')
    a('  s_add_u32 s46, s46, 4\n  s_addc_u32 s47, s47, 0\n  s_setpc_b64 s[46:47]')
    a(f'''.section .rodata,"a"
.p2align 6
.amdhsa_kernel {NAME}
  .amdhsa_next_free_vgpr {acc_off+na}
  .amdhsa_next_free_sgpr 88
  .amdhsa_accum_offset {acc_off}
  .amdhsa_group_segment_fixed_size 0
  .amdhsa_kernarg_size 56
  .amdhsa_user_sgpr_count 2
  .amdhsa_user_sgpr_kernarg_segment_ptr 1
  .amdhsa_system_sgpr_workgroup_id_x 1
  .amdhsa_float_denorm_mode_32 3
.end_amdhsa_kernel
''')
    return '\n'.join(o)
if __name__=='__main__':
    import json
    kw = json.loads(sys.argv[1]) if len(sys.argv)>1 else {}
    print(gen(**kw))
```

```python
import sys
NAME='standalone__linear_kernel_rfa__decode_kernel'
HEAD='''; Kernarg layout for this problem (56 bytes, ptrs only, base s[0:1]):
'''
CTR=0x40000; CTRSTRIDE=4352; NONCE=0x3ff00+0x40000
def gen(sizes=(1,1,1,1), lds=90000, stamps=False, pol='nt', CHK=30, initwg=0, ldpol='sc1', mimic=True, warm=True, outpol='', bar=0, pro=0, layout='iwgwgiiiigi', iperm=(3,1,2,0,4,5), gperm=(0,1,2)):
    o=[]; a=o.append
    NB=2; W=4; nwg=256
    sizes=list(sizes)
    S=64-sum(sizes); R=len(sizes)
    szp=0; pre=0; prep=0
    for r,s in enumerate(sizes): szp|=s<<(4*r); prep|=pre<<(4*r); pre+=s
    P=lambda c:[p+12 for p,ch in enumerate(layout) if ch==c]
    wpos,gpos,ipos=P('w'),P('g'),P('i')
    assert len(layout)==11 and len(wpos)==2 and len(gpos)==3 and len(ipos)==6
    RS=1<<ipos[list(iperm).index(0)]
    def scatter(dst, base, src, pairs, tmp='s45'):
        runs=[]
        for k,p in pairs:
            if runs and runs[-1][1]+runs[-1][2]==p and runs[-1][0]+runs[-1][2]==k: runs[-1][2]+=1
            else: runs.append([k,p,1])
        for (k,p,n) in runs:
            a(f'  s_bfe_u32 {tmp}, {src}, {hex(k|(n<<16))}\n  s_lshl_b32 {tmp}, {tmp}, {p}\n  s_or_b32 {dst}, {base}, {tmp}'); base=dst
    VOFK, VOFV = 1, 2
    DM=4; AM=8; ONE,NEGSEL=12,13; PHIQ=14; KS=16; T=32; PR=40; GR=44; SQ=48; WW=52; DEN=56; ACC=60; AA=64; PK=80; TK=82
    EA=84; KB=92; nv=KB+NB*16
    OM=0; VB=16; na=VB+NB*16
    acc_off=(nv+3)//4*4
    LT=8192
    a(HEAD+f'; @launch grid=({nwg},1,1) block=({64*W},1,1) lds={lds}')
    a('.amdgcn_target "amdgcn-amd-amdhsa--gfx950"\n.text')
    a(f'.globl {NAME}\n.p2align 8\n.type {NAME},@function\n{NAME}:')
    a('  s_load_dwordx2 s[8:9], s[0:1], 8')
    a('  s_load_dwordx2 s[12:13], s[0:1], 16')
    a(f'  s_cmp_ge_u32 s2, {nwg}\n  s_cbranch_scc1 L_end')
    if stamps: a('  s_memrealtime s[70:71]')
    a('  v_lshrrev_b32 v3, 6, v0')
    a('  v_and_b32 v0, 63, v0')
    a('  v_readfirstlane_b32 s3, v3')
    a(f'  v_and_b32 v{T}, 15, v0')
    a(f'  v_lshrrev_b32 v{T+1}, 4, v0')
    a(f'  v_lshlrev_b32 v{VOFK}, 8, v{T}')
    a(f'  v_lshl_add_u32 v{VOFK}, v{T+1}, 4, v{VOFK}')
    a(f'  v_lshlrev_b32 v{VOFV}, 4, v{T}')
    a(f'  v_lshl_add_u32 v{VOFV}, v{T+1}, 10, v{VOFV}')
    a('  s_mov_b32 s10, 0x10000000\n  s_mov_b32 s11, 0x20000')
    a('  s_mov_b32 s14, 0x10000000\n  s_mov_b32 s15, 0x20000')
    a('  s_lshr_b32 s39, s2, 3\n  s_lshl_b32 s57, s39, 23')
    scatter('s57','s57','s3',list(zip([0,1],wpos)))
    scatter('s36','s57','s2',list(zip(gperm,gpos)))
    a('  s_waitcnt lgkmcnt(0)')
    def issueK(b):
        for j in range(4):
            r=KB+b*16+j*4
            a(f'  buffer_load_dwordx4 v[{r}:{r+3}], v{VOFK}, s[8:11], s36 offen offset:{j*64} {pol}')
    def issueV(b):
        for j in range(4):
            r=VB+b*16+j*4
            a(f'  buffer_load_dwordx4 a[{r}:{r+3}], v{VOFV}, s[12:15], s36 offen offset:{j*256} {pol}')
    def omq():
        a('  s_mov_b32 s18, 4096\n  s_mov_b32 s19, 0x20000')
        a('  s_mov_b32 s22, 8192\n  s_mov_b32 s23, 0x20000')
        a('  s_lshl_b32 s44, s39, 8')
        a(f'  v_lshlrev_b32 v3, 4, v{T+1}')
        a('  s_waitcnt lgkmcnt(0)')
        for j in range(4):
            a(f'  buffer_load_dwordx4 a[{OM+j*4}:{OM+j*4+3}], v{VOFK}, s[16:19], 0 offen offset:{j*64}')
        for j in range(4):
            a(f'  buffer_load_dwordx4 v[{AA+j*4}:{AA+j*4+3}], v3, s[20:23], s44 offen offset:{j*64}')
    def ptrs():
        a('  s_load_dwordx2 s[16:17], s[0:1], 24')
        a('  s_load_dwordx2 s[20:21], s[0:1], 0')
        a('  s_load_dwordx2 s[24:25], s[0:1], 48')
        a('  s_load_dwordx2 s[28:29], s[0:1], 32')
        a('  s_load_dwordx2 s[32:33], s[0:1], 40')
    if pro==0:
        issueK(0); ptrs(); issueV(0); a(f'  s_add_u32 s36, s36, {RS}'); omq()
    elif pro==1:
        ptrs(); omq(); issueK(0); issueV(0); a(f'  s_add_u32 s36, s36, {RS}')
    elif pro==2:
        ptrs(); issueK(0); omq(); issueV(0); a(f'  s_add_u32 s36, s36, {RS}')
    issueK(1); issueV(1)
    a('  s_mov_b32 s26, 0x100000\n  s_mov_b32 s27, 0x20000')
    a('  s_mov_b32 s30, 8192\n  s_mov_b32 s31, 0x20000')
    a('  s_mov_b32 s34, 256\n  s_mov_b32 s35, 0x20000')
    a('  s_mov_b32 s40, 0x3e9837f0\n  s_mov_b32 s41, 0x3e9837f0\n  s_mov_b32 s42, 0x3fb8aa3b\n  s_mov_b32 s43, 0xffff0000')
    a(f'  v_lshlrev_b32 v{T+2}, 2, v{T+1}')
    a(f'  v_sub_u32 v{T+2}, v{T}, v{T+2}')
    for r in range(4):
        a(f'  v_cmp_eq_u32 vcc, {r}, v{T+2}\n  s_nop 1\n  v_cndmask_b32 v{DM+r}, 0, -1, vcc')
    a(f'  v_and_b32 v{T+3}, 1, v{T}')
    a(f'  v_cmp_eq_u32 vcc, 1, v{T+3}\n  v_mov_b32 v{T+4}, 0xffff\n  v_mov_b32 v{T+5}, s43\n  v_cndmask_b32 v{T+4}, v{T+4}, v{T+5}, vcc')
    a(f'  v_bfe_u32 v{T+3}, v{T}, 1, 2')
    for q in range(4):
        a(f'  v_cmp_eq_u32 vcc, {q}, v{T+3}\n  s_nop 1\n  v_cndmask_b32 v{AM+q}, 0, v{T+4}, vcc')
    a(f'  v_mov_b32 v{ONE}, 1.0')
    a(f'  v_cmp_lt_u32 vcc, 7, v{T}\n  s_nop 1\n  v_cndmask_b32 v{NEGSEL}, 0, -1.0, vcc')
    for r in range(4):
        a(f'  v_mov_b32 v{DEN+r}, 0\n  v_mov_b32 v{ACC+r}, 0')
    a(f'  v_lshlrev_b32 v{EA}, 5, v{T}\n  v_and_b32 v{T+2}, 1, v{T+1}\n  v_lshl_add_u32 v{EA}, v{T+2}, 4, v{EA}')
    a(f'  v_lshrrev_b32 v{T+2}, 5, v0\n  s_lshl_b32 s45, s3, 1\n  v_add_lshl_u32 v{T+2}, v{T+2}, s45, 9\n  v_add_u32 v{EA}, v{EA}, v{T+2}')
    a(f'  s_lshl_b32 s45, s3, 2\n  v_add_lshl_u32 v{EA+1}, v{T+1}, s45, 2')
    a(f'  v_lshlrev_b32 v{EA+2}, 3, v0\n  v_lshlrev_b32 v{EA+3}, 4, v0\n  v_mov_b32 v{EA+4}, 0\n  v_lshlrev_b32 v{EA+5}, 2, v0')
    a('  s_lshl_b32 s80, s2, 10')
    for k in range(1,8): a(f'  s_xor_b32 s{80+k}, s80, {k*1024}')
    a(f'  s_sub_u32 s37, s36, {RS}\n  s_mov_b32 s38, 2')
    a(f'  s_mov_b32 s59, {S-NB}\n  s_mov_b32 s60, 0\n  s_mov_b32 s61, {LT}')
    a(f'  s_mul_i32 s45, s39, {CTRSTRIDE}\n  s_add_u32 s45, s45, {CTR}\n  s_add_u32 s64, s24, s45\n  s_addc_u32 s65, s25, 0')
    a(f'  s_mov_b32 s66, {szp}\n  s_mov_b32 s67, {prep}')
    if stamps: a('  s_mov_b32 s76, 2')
    a(f'  s_cmp_eq_u32 s2, {initwg}\n  s_cselect_b32 s45, s3, 1\n  s_cmp_eq_u32 s45, 0\n  s_cbranch_scc0 L_noinit')
    a('  s_getpc_b64 s[46:47]\n  s_branch L_init')
    a('L_noinit:')
    if warm:
        a('  s_mov_b64 exec, 0\n  s_branch L_h0\nL_hret:\n  s_mov_b64 exec, -1')
    def feat(src, dst, fill=None):
        for j in range(4):
            for d in range(4):
                x=src+j*4+d; t=T+2*d
                a(f'  v_lshlrev_b32 v{t}, 16, v{x}')
                a(f'  v_and_b32 v{t+1}, s43, v{x}')
            for d in range(4):
                t=T+2*d
                a(f'  v_pk_mul_f32 v[{t}:{t+1}], v[{t}:{t+1}], s[40:41]')
            for d in range(4):
                t=T+2*d
                a(f'  v_cvt_pk_bf16_f32 v{KS+j*4+d}, v{t}, v{t+1}')
            if j>0:
                jj=j-1; k=KS+jj*4
                a(f'  v_mfma_f32_16x16x32_bf16 v[{GR}:{GR+3}], v[{k}:{k+3}], v[{k}:{k+3}], '+('0' if jj==0 else f'v[{GR}:{GR+3}]'))
                a(f'  v_mfma_f32_16x16x32_bf16 v[{PR}:{PR+3}], a[{OM+jj*4}:{OM+jj*4+3}], v[{k}:{k+3}], '+('0' if jj==0 else f'v[{PR}:{PR+3}]'))
        k=KS+12
        a(f'  v_mfma_f32_16x16x32_bf16 v[{GR}:{GR+3}], v[{k}:{k+3}], v[{k}:{k+3}], v[{GR}:{GR+3}]')
        a(f'  v_mfma_f32_16x16x32_bf16 v[{PR}:{PR+3}], a[{OM+12}:{OM+15}], v[{k}:{k+3}], v[{PR}:{PR+3}]')
        if fill: fill()
        else: a('  s_nop 1')
        a('  s_nop 4')
        a(f'  v_and_b32 v{T}, v{GR}, v{DM}')
        a(f'  v_and_or_b32 v{T}, v{GR+1}, v{DM+1}, v{T}')
        a(f'  v_and_or_b32 v{T}, v{GR+2}, v{DM+2}, v{T}')
        a(f'  v_and_or_b32 v{T}, v{GR+3}, v{DM+3}, v{T}')
        a(f'  v_cvt_pk_bf16_f32 v{PR}, 0, v{PR}')
        a(f'  v_cvt_pk_bf16_f32 v{PR+1}, 0, v{PR+1}')
        a(f'  v_mfma_f32_16x16x4_f32 v[{SQ}:{SQ+3}], v{ONE}, v{T}, 0')
        a(f'  v_cvt_pk_bf16_f32 v{PR+2}, 0, v{PR+2}')
        a(f'  v_cvt_pk_bf16_f32 v{PR+3}, 0, v{PR+3}')
        a('  s_nop 7')
        a(f'  v_cvt_pk_bf16_f32 v{T}, 0, v{SQ}')
        for r in range(4): a(f'  v_fma_f32 v{PR+r}, v{T}, -0.5, v{PR+r}')
        for r in range(4): a(f'  v_cvt_pk_bf16_f32 v{PR+r}, 0, v{PR+r}')
        for r in range(4): a(f'  v_fma_f32 v{PR+r}, v{PR+r}, s42, -2.0')
        for r in range(4): a(f'  v_exp_f32 v{PR+r}, v{PR+r}')
        a('  s_nop 0')
        for r in range(4): a(f'  v_cvt_pk_bf16_f32 v{PR+r}, 0, v{PR+r}')
        for r in range(4): a(f'  v_add_f32 v{PR+r}, 0x358637bd, v{PR+r}')
        a(f'  v_cvt_pk_bf16_f32 v{dst}, v{PR}, v{PR+1}')
        a(f'  v_cvt_pk_bf16_f32 v{dst+1}, v{PR+2}, v{PR+3}')
    a(f'  s_waitcnt vmcnt({[8,16,12][pro]})')
    feat(AA, PHIQ)
    def tile(b):
        a('  s_waitcnt vmcnt(12)')
        a(f'  s_cmp_eq_u32 s60, 0\n  s_cbranch_scc1 L_kw{b}\n  s_waitcnt vmcnt(4)\nL_kw{b}:')
        def sched():
            a(f'  s_cmp_lg_u32 s59, 0\n  s_cbranch_scc1 L_sb{b}')
            a(f'  s_cmp_lg_u32 s60, 0\n  s_cbranch_scc1 L_dr{b}')
            if R:
                a(f'  s_xor_b32 s61, s61, 4\n  v_mov_b32 v{TK}, s61')
                a(f'  s_cmp_lg_u32 s3, 0\n  s_cbranch_scc1 L_ot{b}')
                a(f'  s_waitcnt lgkmcnt(0)\n  v_mov_b32 v{TK+1}, s58')
                a(f'  ds_write_b32 v{TK}, v{TK+1}\n  s_waitcnt lgkmcnt(0)\n  s_barrier\n  s_branch L_jn{b}')
                a(f'L_ot{b}:\n  s_barrier\n  ds_read_b32 v{TK+1}, v{TK}\n  s_waitcnt lgkmcnt(0)\n  v_readfirstlane_b32 s58, v{TK+1}')
                a(f'L_jn{b}:')
                a(f'  s_cmp_lt_u32 s58, {R*8}\n  s_cbranch_scc1 L_hv{b}')
            a(f'L_dr{b}:\n  s_add_u32 s60, s60, 1\n  s_branch L_nk{b}')
            if R:
                a(f'L_hv{b}:')
                a('  s_lshr_b32 s45, s58, 3\n  s_lshl_b32 s45, s45, 2\n  s_lshr_b32 s59, s66, s45\n  s_and_b32 s59, s59, 15\n  s_lshr_b32 s38, s67, s45\n  s_and_b32 s38, s38, 15')
                a(f'  s_add_u32 s38, s38, {S}')
                scatter('s37','s57','s58',list(zip(gperm,gpos)))
            if bar==1 or (bar==3 and b==0): a(f'  s_branch L_st{b}\nL_sb{b}:\n  s_barrier')
            else: a(f'L_sb{b}:')
            a(f'L_st{b}:')
            scatter('s36','s37','s38',list(zip(iperm,ipos)))
            a('  s_add_u32 s38, s38, 1\n  s_sub_u32 s59, s59, 1')
            issueK(b)
            if stamps: a('  s_add_u32 s76, s76, 1')
            a(f'  s_cmp_lg_u32 s3, 0\n  s_cbranch_scc1 L_nk{b}')
            if (S-NB-CHK-1) % 2 == b % 2:
                a(f'  s_cmp_eq_u32 s59, {CHK}\n  s_cbranch_scc0 L_nc{b}')
                a('  s_load_dwordx2 s[62:63], s[32:33], 8')
                a(f'L_nc{b}:')
            else:
                a(f'  s_cmp_eq_u32 s59, {CHK-1}\n  s_cbranch_scc0 L_nc{b}')
                a(f'  s_waitcnt lgkmcnt(0)\n  s_cmp_eq_u32 s63, 1\n  s_cbranch_scc1 L_nc{b}')
                a('  s_getpc_b64 s[46:47]\n  s_branch L_init')
                a('  s_mov_b32 s45, 0x100000')
                a(f'L_sp{b}:\n  s_mov_b64 s[62:63], 0\n  s_atomic_add_x2 s[62:63], s[32:33], 8 glc\n  s_waitcnt lgkmcnt(0)')
                a(f'  s_cmp_eq_u32 s63, 1\n  s_cbranch_scc1 L_nc{b}\n  s_sub_u32 s45, s45, 1\n  s_cbranch_scc0 L_sp{b}')
                a(f'L_nc{b}:')
            if R:
                a(f'  s_cmp_eq_u32 s59, 0\n  s_cbranch_scc0 L_nk{b}')
                a('  s_mov_b32 s58, 1\n  s_atomic_add s58, s[64:65], 0 glc')
            a(f'L_nk{b}:')
        feat(KB+b*16, PK, sched)
        a('  s_nop 1')
        a(f'  v_mfma_f32_16x16x16_bf16 v[{WW}:{WW+3}], v[{PK}:{PK+1}], v[{PHIQ}:{PHIQ+1}], 0')
        a(f'  v_mfma_f32_16x16x16_bf16 v[{DEN}:{DEN+3}], v[{PK}:{PK+1}], v[{PHIQ}:{PHIQ+1}], v[{DEN}:{DEN+3}]')
        a('  s_nop 6')
        for r in range(4): a(f'  v_cvt_pk_bf16_f32 v{T+r}, 0, v{WW+r}')
        for r in range(4): a(f'  v_fma_f32 v{T+r}, v{T+r}, v{NEGSEL}, v{WW+r}')
        for r in range(4): a(f'  v_cvt_pk_bf16_f32 v{T+r}, v{T+r}, v{T+r}')
        for r in range(4):
            for q in range(4):
                a(f'  v_and_b32 v{AA+r*4+q}, v{T+r}, v{AM+q}')
        def pv():
            for r in range(4):
                vb=VB+b*16+r*4
                a(f'  v_mfma_f32_16x16x32_bf16 v[{ACC}:{ACC+3}], v[{AA+r*4}:{AA+r*4+3}], a[{vb}:{vb+3}], v[{ACC}:{ACC+3}]')
        a('  s_waitcnt vmcnt(12)')
        a(f'  s_cmp_eq_u32 s60, 0\n  s_cbranch_scc1 L_vw{b}\n  s_waitcnt vmcnt(8)')
        a(f'  s_cmp_eq_u32 s60, 1\n  s_cbranch_scc1 L_vw{b}\n  s_waitcnt vmcnt(0)\nL_vw{b}:')
        pv()
        a(f'  s_cmp_eq_u32 s60, 2\n  s_cbranch_scc1 L_done')
        a(f'  s_cmp_eq_u32 s60, 0\n  s_cbranch_scc0 L_nv{b}')
        issueV(b)
        a(f'L_nv{b}:')
    if bar==2: a('  s_barrier')
    a('L_loop:')
    tile(0); tile(1)
    a('  s_branch L_loop')
    a('L_done:')
    if stamps: a('  s_memrealtime s[72:73]')
    hop=[0]
    def H():
        if warm:
            a(f'L_h{hop[0]}:\n  s_cbranch_execz L_h{hop[0]+1}'); hop[0]+=1
    H()
    a(f'  v_add_f32 v{DEN}, v{DEN}, v{DEN+1}\n  v_add_f32 v{DEN+2}, v{DEN+2}, v{DEN+3}')
    a(f'  v_add_f32 v{DEN}, v{DEN}, v{DEN+2}')
    a('  s_mov_b32 s55, 1')
    a(f'  ds_write_b32 v{EA+1}, v{DEN} offset:4096')
    a('  s_nop 1')
    a(f'  ds_write_b128 v{EA}, v[{ACC}:{ACC+3}]')
    a('  s_waitcnt lgkmcnt(0)\n  s_barrier')
    a('  s_cmp_lg_u32 s3, 0\n  s_cbranch_scc1 L_end')
    X=KS; D=AA; R0=KB
    H()
    for i in range(8): a(f'  ds_read_b64 v[{X+i*2}:{X+i*2+1}], v{EA+2} offset:{i*512}')
    H()
    for i in range(4): a(f'  ds_read_b128 v[{D+i*4}:{D+i*4+3}], v{EA+4} offset:{4096+i*16}')
    a('  s_waitcnt lgkmcnt(4)')
    def pk(d,x,y): a(f'  v_pk_add_f32 v[{d}:{d+1}], v[{x}:{x+1}], v[{y}:{y+1}]')
    for i in range(4): pk(X+i*4, X+i*4, X+i*4+2)
    H()
    pk(X,X,X+4); pk(X+8,X+8,X+12)
    a('  s_waitcnt lgkmcnt(0)')
    for i in range(4): pk(D+i*4, D+i*4, D+i*4+2)
    pk(PR,X,X+8)
    H()
    pk(D,D,D+4); pk(D+8,D+8,D+12); pk(D,D,D+8)
    a(f'  v_mov_b32 v{PR+3}, s62')
    a(f'  v_add_f32 v{PR+2}, v{D}, v{D+1}')
    a(f'  buffer_store_dwordx4 v[{PR}:{PR+3}], v{EA+3}, s[24:27], s80 offen sc1')
    a('  s_atomic_add s55, s[64:65], 4 glc')
    a('  s_mov_b32 s49, 0')
    H()
    a('L_chk:')
    for k in range(1,8):
        a(f'  buffer_load_dwordx4 v[{R0+k*4}:{R0+k*4+3}], v{EA+3}, s[24:27], s{80+k} offen {ldpol}')
    H()
    a('  s_waitcnt lgkmcnt(0)')
    if stamps: a('  s_mov_b64 s[78:79], 0\n  s_memrealtime s[74:75]\n  s_cmp_lg_u32 s55, 7\n  s_cbranch_scc1 L_stamp')
    else: a('  s_cmp_lg_u32 s55, 7\n  s_cbranch_scc1 L_end')
    a('  s_waitcnt vmcnt(0)')
    if stamps: a('  s_waitcnt lgkmcnt(0)\n  s_memrealtime s[74:75]')
    a(f'  v_xor_b32 v{T+3}, v{PR+3}, v{R0+7}')
    for k in range(2,8):
        a(f'  v_bitop3_b32 v{T+3}, v{T+3}, v{R0+k*4+3}, v{PR+3} bitop3:0xf6')
    H()
    a(f'  v_cmp_ne_u32 vcc, 0, v{T+3}')
    pk(R0, PR, R0+4); a(f'  v_add_f32 v{R0+2}, v{PR+2}, v{R0+6}')
    for i in range(1,4):
        pk(R0+i*8, R0+i*8, R0+i*8+4); a(f'  v_add_f32 v{R0+i*8+2}, v{R0+i*8+2}, v{R0+i*8+6}')
    a('  s_cbranch_vccnz L_again')
    a('L_fin:')
    H()
    a(f'  v_add_f32 v{R0+2}, v{R0+2}, v{R0+10}\n  v_add_f32 v{R0+18}, v{R0+18}, v{R0+26}')
    pk(R0, R0, R0+8)
    a(f'  v_add_f32 v{R0+2}, v{R0+2}, v{R0+18}')
    pk(R0+16, R0+16, R0+24)
    a(f'  v_add_f32 v{R0+2}, 0x358637bd, v{R0+2}')
    a(f'  v_rcp_f32 v{R0+3}, v{R0+2}')
    pk(R0,R0,R0+16)
    H()
    for r in range(2): a(f'  v_mul_f32 v{R0+4+r}, v{R0+r}, v{R0+3}')
    for r in range(2): a(f'  v_fma_f32 v{R0+6+r}, -v{R0+4+r}, v{R0+2}, v{R0+r}')
    for r in range(2): a(f'  v_fma_f32 v{R0+4+r}, v{R0+6+r}, v{R0+3}, v{R0+4+r}')
    a(f'  v_cvt_pk_bf16_f32 v{R0}, v{R0+4}, v{R0+5}')
    if warm: a(f'L_h{hop[0]}:\n  s_cbranch_execz L_hret')
    a(f'  buffer_store_dword v{R0}, v{EA+5}, s[28:31], s44 offen {outpol}')
    if stamps:
        a('  s_waitcnt vmcnt(0)\n  s_memrealtime s[78:79]')
        a('L_stamp:\n  s_getreg_b32 s77, hwreg(HW_REG_XCC_ID)\n  s_waitcnt lgkmcnt(0)')
        a(f'  v_mov_b32 v{KS}, s70\n  v_mov_b32 v{KS+1}, s71\n  v_mov_b32 v{KS+2}, s72\n  v_mov_b32 v{KS+3}, s73')
        a(f'  v_mov_b32 v{KS+4}, s74\n  v_mov_b32 v{KS+5}, s75\n  v_mov_b32 v{KS+6}, s77\n  v_mov_b32 v{KS+7}, s76')
        a(f'  v_mov_b32 v{KS+8}, s78\n  v_mov_b32 v{KS+9}, s79\n  v_mov_b32 v{KS+10}, s49\n  v_mov_b32 v{KS+11}, 0')
        a(f'  s_lshl_b32 s47, s2, 6\n  s_add_u32 s47, s47, 0x80000\n  v_mov_b32 v{KS+12}, 0\n  s_mov_b64 exec, 1')
        for i in range(3): a(f'  buffer_store_dwordx4 v[{KS+4*i}:{KS+4*i+3}], v{KS+12}, s[24:27], s47 offen offset:{16*i}')
    a('L_end:\n  s_endpgm')
    a('L_again:\n  s_add_u32 s49, s49, 1\n  s_cmp_lt_u32 s49, 0x100000\n  s_cbranch_scc1 L_chk\n  s_branch L_fin')
    a('L_init:')
    a('  s_mov_b32 s45, 1\n  s_atomic_add s45, s[32:33], 0 glc\n  s_waitcnt lgkmcnt(0)')
    a('  s_cmp_eq_u32 s45, 0\n  s_cbranch_scc0 L_iret')
    a(f'  s_mov_b32 s45, 1\n  s_mov_b32 s50, {NONCE}\n  s_atomic_add s45, s[24:25], s50 glc')
    a(f'  s_movk_i32 s48, {CTRSTRIDE}\n  v_mul_lo_u32 v{TK}, v0, s48\n  v_mov_b32 v{T}, 0\n  v_mov_b32 v{T+1}, 0\n  s_mov_b32 s48, {CTR}')
    a(f'  s_mov_b32 exec_hi, 0\n  buffer_store_dwordx2 v[{T}:{T+1}], v{TK}, s[24:27], s48 offen sc1\n  s_mov_b32 exec_hi, -1')
    a('  s_waitcnt vmcnt(0) lgkmcnt(0)')
    a('  s_add_u32 s48, s45, 1\n  s_mov_b32 s49, 1\n  s_atomic_swap_x2 s[48:49], s[32:33], 8 glc\n  s_waitcnt lgkmcnt(0)')
    a('L_iret:')
    a('  s_add_u32 s46, s46, 4\n  s_addc_u32 s47, s47, 0\n  s_setpc_b64 s[46:47]')
    a(f'''.section .rodata,"a"
.p2align 6
.amdhsa_kernel {NAME}
  .amdhsa_next_free_vgpr {acc_off+na}
  .amdhsa_next_free_sgpr 88
  .amdhsa_accum_offset {acc_off}
  .amdhsa_group_segment_fixed_size 0
  .amdhsa_kernarg_size 56
  .amdhsa_user_sgpr_count 2
  .amdhsa_user_sgpr_kernarg_segment_ptr 1
  .amdhsa_system_sgpr_workgroup_id_x 1
  .amdhsa_float_denorm_mode_32 3
.end_amdhsa_kernel
''')
    return '\n'.join(o)
if __name__=='__main__':
    import json
    kw = json.loads(sys.argv[1]) if len(sys.argv)>1 else {}
    print(gen(**kw))
```

```python
import sys
NAME='standalone__linear_kernel_rfa__decode_kernel'
HEAD='''; Kernarg layout for this problem (56 bytes, ptrs only, base s[0:1]):
'''
CTR=0x40000; CTRSTRIDE=4352; NONCE=0x7ff00
def gen(sizes=(2,1,1), win=20, LAG=5, stamps=False, pol='nt', CHK=30, initwg=0, ldpol='sc1', warm=True, outpol='',
        layout='wwgiiiiiigg', iperm=(0,1,2,3,4,5), gperm=(0,1,2), prio=3, padc=0, mimic=True):
    o=[]; a=o.append
    nwg=256
    sizes=list(sizes); S=64-sum(sizes); R=len(sizes)
    szp=0; pre=0; prep=0
    for r,s in enumerate(sizes): szp|=s<<(4*r); prep|=pre<<(4*r); pre+=s
    P=lambda c:[p+12 for p,ch in enumerate(layout) if ch==c]
    wpos,gpos,ipos=P('w'),P('g'),P('i')
    assert len(layout)==11 and len(wpos)==2 and len(gpos)==3 and len(ipos)==6
    toff=[((t&1)<<wpos[0])|((t>>1)<<wpos[1]) for t in range(4)]
    NSTAR=win-17
    assert 0<=NSTAR<8 and 3<=LAG<=6
    RING=0x20000; LW=RING; LRED=LW+16384; LDEN=LRED+4096; LCTL=LDEN+64; lds=LCTL+64
    def scatter(dst, base, src, pairs, tmp='s45'):
        runs=[]
        for k,p in pairs:
            if runs and runs[-1][1]+runs[-1][2]==p and runs[-1][0]+runs[-1][2]==k: runs[-1][2]+=1
            else: runs.append([k,p,1])
        for (k,p,n) in runs:
            a(f'  s_bfe_u32 {tmp}, {src}, {hex(k|(n<<16))}\n  s_lshl_b32 {tmp}, {tmp}, {p}\n  s_or_b32 {dst}, {base}, {tmp}'); base=dst
    VK=2
    VV=6
    DM=10; AM=14; ONE,NEGSEL=18,19; PHIQ=20; PK=22; T=24; KS=32; KR=48; PR=64; GR=68; SQ=72; WW=76; DEN=80; ACC=84; AA=88
    BK=104
    BV=108; BW=109; BC=110; EA=111; EB=112; AD=114
    nv=118
    OM=0; na=16
    acc_off=(nv+3)//4*4
    a(HEAD+f'; @launch grid=({nwg},1,1) block=(320,1,1) lds={lds}')
    a('.amdgcn_target "amdgcn-amd-amdhsa--gfx950"\n.text')
    a(f'.globl {NAME}\n.p2align 8\n.type {NAME},@function\n{NAME}:')
    a('  s_load_dwordx2 s[8:9], s[0:1], 8')
    a(f'  s_cmp_ge_u32 s2, {nwg}\n  s_cbranch_scc1 L_end')
    if stamps: a('  s_memrealtime s[70:71]')
    a('  v_lshrrev_b32 v1, 6, v0')
    a('  v_and_b32 v0, 63, v0')
    a('  v_readfirstlane_b32 s3, v1')
    a(f'  v_lshrrev_b32 v{T+1}, 4, v0')
    a(f'  v_xor_b32 v{VK}, v0, v{T+1}')
    a(f'  v_lshlrev_b32 v{VK}, 4, v{VK}')
    for p in range(1,4): a(f'  v_xor_b32 v{VK+p}, {p*1024+p*64}, v{VK}')
    a('  s_lshr_b32 s39, s2, 3')
    a('  s_cmp_lg_u32 s3, 0\n  s_cbranch_scc1 L_cons')
    a(f'  s_setprio {prio}')
    a('  s_mov_b32 s10, 0x10000000\n  s_mov_b32 s11, 0x20000')
    a('  s_lshl_b32 s57, s39, 23')
    scatter('s37','s57','s2',list(zip(gperm,gpos)))
    a('  s_mov_b32 m0, 0\n  s_movk_i32 s56, 1024\n  s_mov_b64 vcc, 0')
    def addr():
        scatter('s16','s37','s38',list(zip(iperm,ipos)))
        for t in range(1,4): a(f'  s_add_u32 s{16+t}, s16, {toff[t]}')
        a('  s_add_u32 s38, s38, 1')
    lab=[0]
    def group(srd, vo, cond=False, extra=None, hooks={}):
        n=0
        for p in range(4):
            for t in range(4):
                a(f'  s_waitcnt vmcnt({win-1})')
                if n==NSTAR:
                    if cond:
                        lab[0]+=1
                        a(f'  s_cbranch_vccz L_nb{lab[0]}\n  s_barrier\nL_nb{lab[0]}:')
                    else: a('  s_barrier')
                if extra and n==NSTAR+8:
                    lab[0]+=1
                    a(f'  s_cbranch_vccz L_nb{lab[0]}\n  s_barrier\nL_nb{lab[0]}:')
                a(f'  buffer_load_dwordx4 v{vo+p}, s[{srd}:{srd+3}], s{16+t} offen {pol} lds')
                a('  s_add_u32 m0, m0, s56')
                if n in hooks: hooks[n]()
                n+=1
        a(f'  s_and_b32 m0, m0, {RING-1}')
    a('  s_mov_b32 s16, s37')
    for t in range(1,4): a(f'  s_add_u32 s{16+t}, s16, {toff[t]}')
    a('  s_waitcnt lgkmcnt(0)')
    for n in range(win):
        if n==16:
            for t in range(4): a(f'  s_add_u32 s{16+t}, s{16+t}, {1<<ipos[list(iperm).index(0)]}')
        a(f'  buffer_load_dwordx4 v{VK+(n%16)//4}, s[8:11], s{16+n%4} offen {pol} lds')
        a('  s_add_u32 m0, m0, s56')
        if n!=15: a('  s_nop 0')
    a('  s_mov_b32 s38, 2')
    a('  s_load_dwordx2 s[12:13], s[0:1], 16')
    a('  s_load_dwordx2 s[24:25], s[0:1], 48')
    a('  s_load_dwordx2 s[28:29], s[0:1], 32')
    a('  s_load_dwordx2 s[32:33], s[0:1], 40')
    a('  s_mov_b32 s14, 0x10000000\n  s_mov_b32 s15, 0x20000')
    a('  s_mov_b32 s26, 0x100000\n  s_mov_b32 s27, 0x20000')
    a('  s_mov_b32 s30, 8192\n  s_mov_b32 s31, 0x20000')
    a(f'  v_lshlrev_b32 v{VV}, 4, v0')
    for p in range(1,4): a(f'  v_add_u32 v{VV+p}, {p*1024}, v{VV}')
    a(f'  v_lshlrev_b32 v{EA}, 3, v0\n  v_add_u32 v{EA}, {LRED}, v{EA}\n  v_mov_b32 v{EB}, {LDEN}\n  v_mov_b32 v{BC}, {LCTL}\n  v_lshlrev_b32 v{AD}, 2, v0')
    a('  s_lshl_b32 s44, s39, 8\n  s_lshl_b32 s80, s2, 10')
    for k in range(1,8): a(f'  s_xor_b32 s{80+k}, s80, {k*1024}')
    a(f'  s_mov_b32 s66, {szp}\n  s_mov_b32 s67, {prep}')
    a(f'  s_mul_i32 s45, s39, {CTRSTRIDE}\n  s_add_u32 s45, s45, {CTR}')
    a('  s_waitcnt lgkmcnt(0)')
    a('  s_add_u32 s64, s24, s45\n  s_addc_u32 s65, s25, 0')
    a('  s_branch L_kback')
    a('L_k:')
    addr()
    def khook():
        a(f'  s_cmp_eq_u32 s38, {CHK}\n  s_cbranch_scc1 L_ask')
        a(f'  s_cmp_eq_u32 s38, {CHK+2}\n  s_cbranch_scc1 L_got')
        a('L_kback:')
    group(8, VK, cond=True, hooks={NSTAR:khook})
    a(f'  s_cmp_ge_u32 s38, {LAG-1}\n  s_cselect_b64 vcc, -1, 0')
    a(f'  s_cmp_lt_u32 s38, {S}\n  s_cbranch_scc1 L_k')
    if stamps: a('  s_memrealtime s[68:69]')
    a('  s_mov_b32 s38, 0')
    a('L_v:')
    addr()
    a(f'  s_sub_u32 s45, s38, {LAG+4}\n  s_cmp_lt_u32 s45, {LAG-2}\n  s_cselect_b64 vcc, -1, 0')
    def req(): a('  s_mov_b32 s58, 1\n  s_atomic_add s58, s[64:65], 0 glc')
    if R:
        a(f'  s_cmp_eq_u32 s38, {S-1}\n  s_cbranch_scc0 L_nr'); req(); a('L_nr:')
    group(12, VV, extra=True)
    a(f'  s_cmp_lt_u32 s38, {S}\n  s_cbranch_scc1 L_v')
    a(f'  s_mov_b32 s60, {S}')
    if R:
        a('L_d:')
        a(f'  s_waitcnt lgkmcnt(0)\n  s_cmp_lt_u32 s58, {R*8}\n  s_cbranch_scc0 L_fin')
        a('  s_lshr_b32 s45, s58, 3\n  s_lshl_b32 s45, s45, 2\n  s_lshr_b32 s59, s66, s45\n  s_and_b32 s59, s59, 15\n  s_lshr_b32 s38, s67, s45\n  s_and_b32 s38, s38, 15')
        a(f'  s_add_u32 s38, s38, {S}')
        scatter('s37','s57','s58',list(zip(gperm,gpos)))
        a('L_d2:')
        addr()
        a('  s_cmp_eq_u32 s59, 1\n  s_cbranch_scc0 L_nr2'); req(); a('L_nr2:')
        group(8, VK); group(12, VV)
        a('  s_add_u32 s60, s60, 1\n  s_sub_u32 s59, s59, 1\n  s_cmp_lg_u32 s59, 0\n  s_cbranch_scc1 L_d2\n  s_branch L_d')
    a('L_fin:')
    hop=[0]
    def H():
        if warm:
            a(f'L_h{hop[0]}:\n  s_cbranch_execz L_h{hop[0]+1}'); hop[0]+=1
    H()
    a(f'  v_mov_b32 v{T}, s60\n  ds_write_b32 v{BC}, v{T}\n  s_mov_b32 s55, 1\n  s_mov_b32 s49, 0')
    a('  s_waitcnt vmcnt(16) lgkmcnt(0)\n  s_barrier')
    a('  s_waitcnt vmcnt(0)')
    if stamps: a('  s_memrealtime s[72:73]')
    a('  s_barrier')
    if stamps: a('  s_waitcnt lgkmcnt(0)')
    a('  s_barrier')
    X=KS; D=KR; R0=64; MY=PK+2
    MY=28
    H()
    for i in range(8): a(f'  ds_read_b64 v[{X+i*2}:{X+i*2+1}], v{EA} offset:{i*512}')
    H()
    for i in range(4): a(f'  ds_read_b128 v[{D+i*4}:{D+i*4+3}], v{EB} offset:{i*16}')
    a('  s_waitcnt lgkmcnt(4)')
    def pk(d,x,y): a(f'  v_pk_add_f32 v[{d}:{d+1}], v[{x}:{x+1}], v[{y}:{y+1}]')
    for i in range(4): pk(X+i*4, X+i*4, X+i*4+2)
    H()
    pk(X,X,X+4); pk(X+8,X+8,X+12)
    a('  s_waitcnt lgkmcnt(0)')
    for i in range(4): pk(D+i*4, D+i*4, D+i*4+2)
    pk(MY,X,X+8)
    H()
    pk(D,D,D+4); pk(D+8,D+8,D+12); pk(D,D,D+8)
    a(f'  v_mov_b32 v{MY+3}, s62')
    a(f'  v_add_f32 v{MY+2}, v{D}, v{D+1}')
    a(f'  buffer_store_dwordx4 v[{MY}:{MY+3}], v{VV}, s[24:27], s80 offen sc1')
    a('  s_atomic_add s55, s[64:65], 4 glc')
    H()
    a('L_chk:')
    for k in range(1,8):
        a(f'  buffer_load_dwordx4 v[{R0+k*4}:{R0+k*4+3}], v{VV}, s[24:27], s{80+k} offen {ldpol}')
    H()
    a('  s_waitcnt lgkmcnt(0)')
    if stamps: a('  s_mov_b64 s[78:79], 0\n  s_memrealtime s[74:75]\n  s_cmp_lg_u32 s55, 7\n  s_cbranch_scc1 L_stamp')
    else: a('  s_cmp_lg_u32 s55, 7\n  s_cbranch_scc1 L_end')
    a('  s_waitcnt vmcnt(0)')
    if stamps: a('  s_waitcnt lgkmcnt(0)\n  s_memrealtime s[74:75]')
    a(f'  v_xor_b32 v{T}, v{MY+3}, v{R0+7}')
    for k in range(2,8):
        a(f'  v_bitop3_b32 v{T}, v{T}, v{R0+k*4+3}, v{MY+3} bitop3:0xf6')
    H()
    a(f'  v_cmp_ne_u32 vcc, 0, v{T}')
    pk(R0, MY, R0+4); a(f'  v_add_f32 v{R0+2}, v{MY+2}, v{R0+6}')
    for i in range(1,4):
        pk(R0+i*8, R0+i*8, R0+i*8+4); a(f'  v_add_f32 v{R0+i*8+2}, v{R0+i*8+2}, v{R0+i*8+6}')
    a('  s_cbranch_vccnz L_again')
    a('L_out:')
    H()
    a(f'  v_add_f32 v{R0+2}, v{R0+2}, v{R0+10}\n  v_add_f32 v{R0+18}, v{R0+18}, v{R0+26}')
    pk(R0, R0, R0+8)
    a(f'  v_add_f32 v{R0+2}, v{R0+2}, v{R0+18}')
    pk(R0+16, R0+16, R0+24)
    a(f'  v_add_f32 v{R0+2}, 0x358637bd, v{R0+2}')
    a(f'  v_rcp_f32 v{R0+3}, v{R0+2}')
    pk(R0,R0,R0+16)
    H()
    for r in range(2): a(f'  v_mul_f32 v{R0+4+r}, v{R0+r}, v{R0+3}')
    for r in range(2): a(f'  v_fma_f32 v{R0+6+r}, -v{R0+4+r}, v{R0+2}, v{R0+r}')
    for r in range(2): a(f'  v_fma_f32 v{R0+4+r}, v{R0+6+r}, v{R0+3}, v{R0+4+r}')
    a(f'  v_cvt_pk_bf16_f32 v{R0}, v{R0+4}, v{R0+5}')
    if warm: a(f'L_h{hop[0]}:\n  s_cbranch_execz L_hret')
    a(f'  buffer_store_dword v{R0}, v{AD}, s[28:31], s44 offen {outpol}')
    if stamps:
        a('  s_waitcnt vmcnt(0)\n  s_memrealtime s[78:79]')
        a('L_stamp:\n  s_getreg_b32 s77, hwreg(HW_REG_XCC_ID)\n  s_waitcnt lgkmcnt(0)')
        a(f'  v_mov_b32 v{KS}, s70\n  v_mov_b32 v{KS+1}, s71\n  v_mov_b32 v{KS+2}, s72\n  v_mov_b32 v{KS+3}, s73')
        a(f'  v_mov_b32 v{KS+4}, s74\n  v_mov_b32 v{KS+5}, s75\n  v_mov_b32 v{KS+6}, s77\n  v_mov_b32 v{KS+7}, s60')
        a(f'  v_mov_b32 v{KS+8}, s78\n  v_mov_b32 v{KS+9}, s79\n  v_mov_b32 v{KS+10}, s49\n  v_mov_b32 v{KS+11}, 0')
        a(f'  v_mov_b32 v{KS+12}, s68\n  v_mov_b32 v{KS+13}, s69')
        a(f'  s_lshl_b32 s47, s2, 6\n  s_add_u32 s47, s47, 0x80000\n  v_mov_b32 v{T}, 0\n  s_mov_b64 exec, 1')
        for i in range(4): a(f'  buffer_store_dwordx4 v[{KS+4*i}:{KS+4*i+3}], v{T}, s[24:27], s47 offen offset:{16*i}')
    a('L_end:\n  s_endpgm')
    a('L_again:\n  s_add_u32 s49, s49, 1\n  s_cmp_lt_u32 s49, 0x100000\n  s_cbranch_scc1 L_chk\n  s_branch L_out')
    a('L_ask:\n  s_load_dwordx2 s[62:63], s[32:33], 8\n  s_branch L_kback')
    a('L_got:\n  s_waitcnt lgkmcnt(0)\n  s_cmp_eq_u32 s63, 1\n  s_cbranch_scc1 L_kback')
    a('  s_call_b64 s[46:47], L_init')
    a('  s_mov_b32 s45, 0x100000')
    a('L_sp:\n  s_mov_b64 s[62:63], 0\n  s_atomic_add_x2 s[62:63], s[32:33], 8 glc\n  s_waitcnt lgkmcnt(0)')
    a('  s_cmp_eq_u32 s63, 1\n  s_cbranch_scc1 L_kback\n  s_sub_u32 s45, s45, 1\n  s_cbranch_scc0 L_sp\n  s_branch L_kback')
    a('L_init:')
    a('  s_mov_b32 s45, 1\n  s_atomic_add s45, s[32:33], 0 glc\n  s_waitcnt lgkmcnt(0)')
    a('  s_cmp_eq_u32 s45, 0\n  s_cbranch_scc0 L_iret')
    a(f'  s_mov_b32 s45, 1\n  s_mov_b32 s50, {NONCE}\n  s_atomic_add s45, s[24:25], s50 glc')
    a(f'  s_movk_i32 s48, {CTRSTRIDE}\n  v_mul_lo_u32 v{KS+2}, v0, s48\n  v_mov_b32 v{KS}, 0\n  v_mov_b32 v{KS+1}, 0\n  s_mov_b32 s48, {CTR}')
    a(f'  s_mov_b32 exec_hi, 0\n  buffer_store_dwordx2 v[{KS}:{KS+1}], v{KS+2}, s[24:27], s48 offen sc1\n  s_mov_b32 exec_hi, -1')
    a('  s_waitcnt vmcnt(0) lgkmcnt(0)')
    a('  s_add_u32 s48, s45, 1\n  s_mov_b32 s49, 1\n  s_atomic_swap_x2 s[48:49], s[32:33], 8 glc\n  s_waitcnt lgkmcnt(0)')
    a('L_iret:')
    a('  s_setpc_b64 s[46:47]')
    a('L_cons:')
    a('  s_sub_u32 s3, s3, 1')
    a('  s_load_dwordx2 s[16:17], s[0:1], 24')
    a('  s_load_dwordx2 s[20:21], s[0:1], 0')
    a('  s_load_dwordx2 s[24:25], s[0:1], 48')
    a('  s_load_dwordx2 s[32:33], s[0:1], 40')
    a('  s_mov_b32 s18, 4096\n  s_mov_b32 s19, 0x20000')
    a('  s_mov_b32 s22, 8192\n  s_mov_b32 s23, 0x20000')
    a('  s_mov_b32 s26, 0x100000\n  s_mov_b32 s27, 0x20000')
    a('  s_mov_b32 s40, 0x3e9837f0\n  s_mov_b32 s41, 0x3e9837f0\n  s_mov_b32 s42, 0x3fb8aa3b\n  s_mov_b32 s43, 0xffff0000')
    a('  s_lshl_b32 s44, s39, 8')
    a(f'  v_and_b32 v{T}, 15, v0')
    a(f'  v_lshlrev_b32 v{T+2}, 2, v{T+1}')
    a(f'  v_sub_u32 v{T+2}, v{T}, v{T+2}')
    for r in range(4):
        a(f'  v_cmp_eq_u32 vcc, {r}, v{T+2}\n  s_nop 1\n  v_cndmask_b32 v{DM+r}, 0, -1, vcc')
    a(f'  v_and_b32 v{T+3}, 1, v{T}')
    a(f'  v_cmp_eq_u32 vcc, 1, v{T+3}\n  v_mov_b32 v{T+4}, 0xffff\n  v_mov_b32 v{T+5}, s43\n  v_cndmask_b32 v{T+4}, v{T+4}, v{T+5}, vcc')
    a(f'  v_bfe_u32 v{T+3}, v{T}, 1, 2')
    for q in range(4):
        a(f'  v_cmp_eq_u32 vcc, {q}, v{T+3}\n  s_nop 1\n  v_cndmask_b32 v{AM+q}, 0, v{T+4}, vcc')
    a(f'  v_mov_b32 v{ONE}, 1.0')
    a(f'  v_cmp_lt_u32 vcc, 7, v{T}\n  s_nop 1\n  v_cndmask_b32 v{NEGSEL}, 0, -1.0, vcc')
    for r in range(4):
        a(f'  v_mov_b32 v{DEN+r}, 0\n  v_mov_b32 v{ACC+r}, 0')
    a(f'  v_lshrrev_b32 v{T+2}, 2, v{T}\n  v_lshlrev_b32 v{BK}, 12, v{T+2}\n  v_and_b32 v{T+2}, 3, v{T}\n  v_lshl_add_u32 v{BK}, v{T+2}, 8, v{BK}')
    a(f'  v_xor_b32 v{T+2}, v{T}, v{T+1}\n  v_lshl_add_u32 v{BK}, v{T+2}, 4, v{BK}')
    for j in range(1,4): a(f'  v_xor_b32 v{BK+j}, {j*64}, v{BK}')
    a(f'  v_lshlrev_b32 v{BV}, 12, v{T+1}\n  v_lshl_add_u32 v{BV}, v{T}, 4, v{BV}')
    a(f'  s_lshl_b32 s45, s3, 6\n  s_add_u32 s45, s45, {LW}\n  v_lshl_add_u32 v{BW}, v{T+1}, 4, s45')
    a(f'  v_mov_b32 v{BC}, {LCTL}')
    a(f'  v_lshlrev_b32 v{EA}, 5, v{T}\n  v_and_b32 v{T+2}, 1, v{T+1}\n  v_lshl_add_u32 v{EA}, v{T+2}, 4, v{EA}')
    a(f'  v_lshrrev_b32 v{T+2}, 5, v0\n  s_lshl_b32 s45, s3, 1\n  v_add_lshl_u32 v{T+2}, v{T+2}, s45, 9\n  v_add_u32 v{EA}, v{EA}, v{T+2}\n  v_add_u32 v{EA}, {LRED}, v{EA}')
    a(f'  s_lshl_b32 s45, s3, 2\n  v_add_lshl_u32 v{EB}, v{T+1}, s45, 2\n  v_add_u32 v{EB}, {LDEN}, v{EB}')
    a('  s_waitcnt lgkmcnt(0)')
    A7=7*16384
    a('  s_cmp_eq_u32 s3, 0\n  s_cbranch_scc0 L_c1')
    for p in range(4):
        a(f'  s_mov_b32 m0, {A7+p*4096}\n  s_nop 0\n  buffer_load_dwordx4 v{VK+p}, s[16:19], 0 offen lds')
    a('  s_branch L_c3')
    a('L_c1:\n  s_cmp_eq_u32 s3, 1\n  s_cbranch_scc0 L_c2')
    for p in range(4):
        a(f'  s_mov_b32 m0, {A7+p*4096+1024}\n  v_and_b32 v{VK+p}, 0xff, v{VK+p}\n  buffer_load_dwordx4 v{VK+p}, s[20:23], s44 offen lds')
    a('  s_branch L_c3')
    a('L_c2:\n  s_cmp_eq_u32 s3, 2\n  s_cbranch_scc0 L_c4')
    a(f'  ds_write_b32 v{BC}, v{DEN}')
    a(f'  s_cmp_eq_u32 s2, {initwg}\n  s_cbranch_scc0 L_c3')
    a('  s_call_b64 s[46:47], L_init')
    a('  s_branch L_c3')
    a('L_c4:')
    if warm: a('  s_mov_b64 exec, 0\n  s_branch L_h0\nL_hret:\n  s_mov_b64 exec, -1')
    a('L_c3:')
    a(f'  s_mov_b32 s50, {A7+1024}\n  s_mov_b32 s51, -1\n  s_mov_b32 s52, 0')
    for j in range(4): a(f'  v_add_u32 v{AD+j}, {A7}, v{BK+j}')
    a('  s_waitcnt vmcnt(0) lgkmcnt(0)\n  s_barrier')
    for j in range(4): a(f'  ds_read_b128 a[{OM+j*4}:{OM+j*4+3}], v{AD+j}')
    for j in range(4): a(f'  v_add_u32 v{AD+j}, s50, v{BK+j}')
    a('  s_waitcnt lgkmcnt(0)')
    a('  s_branch L_K1')
    a('.p2align 6')
    for i in range(padc): a('  s_nop 0')
    a('L_K:')
    for j in range(4): a(f'  v_add_u32 v{AD+j}, s50, v{BK+j}')
    a('  s_barrier')
    a('L_K1:')
    for j in range(4): a(f'  ds_read_b128 v[{KR+j*4}:{KR+j*4+3}], v{AD+j}')
    a(f'  s_add_u32 s50, s50, 0x4000\n  s_and_b32 s50, s50, {RING-1}')
    a(f'  s_and_b32 s45, s51, 63\n  s_lshl_b32 s45, s45, 8\n  v_add_u32 v{AD}, s45, v{BW}')
    src=KR
    for j in range(4):
        a(f'  s_waitcnt lgkmcnt({3-j})')
        for d in range(4):
            x=src+j*4+d; t=T+2*d
            a(f'  v_lshlrev_b32 v{t}, 16, v{x}')
            a(f'  v_and_b32 v{t+1}, s43, v{x}')
        for d in range(4):
            t=T+2*d
            a(f'  v_pk_mul_f32 v[{t}:{t+1}], v[{t}:{t+1}], s[40:41]')
        for d in range(4):
            t=T+2*d
            a(f'  v_cvt_pk_bf16_f32 v{KS+j*4+d}, v{t}, v{t+1}')
        if j>0:
            jj=j-1; k=KS+jj*4
            a(f'  v_mfma_f32_16x16x32_bf16 v[{GR}:{GR+3}], v[{k}:{k+3}], v[{k}:{k+3}], '+('0' if jj==0 else f'v[{GR}:{GR+3}]'))
            a(f'  v_mfma_f32_16x16x32_bf16 v[{PR}:{PR+3}], a[{OM+jj*4}:{OM+jj*4+3}], v[{k}:{k+3}], '+('0' if jj==0 else f'v[{PR}:{PR+3}]'))
    k=KS+12
    a(f'  v_mfma_f32_16x16x32_bf16 v[{GR}:{GR+3}], v[{k}:{k+3}], v[{k}:{k+3}], v[{GR}:{GR+3}]')
    a(f'  v_mfma_f32_16x16x32_bf16 v[{PR}:{PR+3}], a[{OM+12}:{OM+15}], v[{k}:{k+3}], v[{PR}:{PR+3}]')
    a('  s_nop 6')
    a(f'  v_and_b32 v{T}, v{GR}, v{DM}')
    a(f'  v_and_or_b32 v{T}, v{GR+1}, v{DM+1}, v{T}')
    a(f'  v_and_or_b32 v{T}, v{GR+2}, v{DM+2}, v{T}')
    a(f'  v_and_or_b32 v{T}, v{GR+3}, v{DM+3}, v{T}')
    a(f'  v_cvt_pk_bf16_f32 v{PR}, 0, v{PR}')
    a(f'  v_cvt_pk_bf16_f32 v{PR+1}, 0, v{PR+1}')
    a(f'  v_mfma_f32_16x16x4_f32 v[{SQ}:{SQ+3}], v{ONE}, v{T}, 0')
    a(f'  v_cvt_pk_bf16_f32 v{PR+2}, 0, v{PR+2}')
    a(f'  v_cvt_pk_bf16_f32 v{PR+3}, 0, v{PR+3}')
    a('  s_nop 7')
    a(f'  v_cvt_pk_bf16_f32 v{T}, 0, v{SQ}')
    for r in range(4): a(f'  v_fma_f32 v{PR+r}, v{T}, -0.5, v{PR+r}')
    for r in range(4): a(f'  v_cvt_pk_bf16_f32 v{PR+r}, 0, v{PR+r}')
    for r in range(4): a(f'  v_fma_f32 v{PR+r}, v{PR+r}, s42, -2.0')
    for r in range(4): a(f'  v_exp_f32 v{PR+r}, v{PR+r}')
    a('  s_add_u32 s51, s51, 1')
    for r in range(4): a(f'  v_cvt_pk_bf16_f32 v{PR+r}, 0, v{PR+r}')
    for r in range(4): a(f'  v_add_f32 v{PR+r}, 0x358637bd, v{PR+r}')
    a(f'  v_cvt_pk_bf16_f32 v{PK}, v{PR}, v{PR+1}')
    a(f'  v_cvt_pk_bf16_f32 v{PK+1}, v{PR+2}, v{PR+3}')
    a('  s_cmp_eq_u32 s51, 0\n  s_cbranch_scc1 L_Q')
    a(f'  v_mfma_f32_16x16x16_bf16 v[{WW}:{WW+3}], v[{PK}:{PK+1}], v[{PHIQ}:{PHIQ+1}], 0')
    a(f'  v_mfma_f32_16x16x16_bf16 v[{DEN}:{DEN+3}], v[{PK}:{PK+1}], v[{PHIQ}:{PHIQ+1}], v[{DEN}:{DEN+3}]')
    a(f'  s_cmp_lt_u32 s51, {S}')
    a('  s_nop 5')
    a(f'  ds_write_b128 v{AD}, v[{WW}:{WW+3}]')
    a('  s_cbranch_scc1 L_K')
    a('L_V:')
    a(f'  s_and_b32 s45, s52, 63\n  s_lshl_b32 s45, s45, 8\n  v_add_u32 v{AD}, s45, v{BW}')
    a(f'  ds_read_b128 v[{WW}:{WW+3}], v{AD}')
    a(f'  v_add_u32 v{AD+1}, s50, v{BV}')
    a(f'  s_add_u32 s50, s50, 0x4000\n  s_and_b32 s50, s50, {RING-1}\n  s_add_u32 s52, s52, 1')
    a('  s_waitcnt lgkmcnt(0)')
    for r in range(4): a(f'  v_cvt_pk_bf16_f32 v{T+r}, 0, v{WW+r}')
    for r in range(4): a(f'  v_fma_f32 v{T+r}, v{T+r}, v{NEGSEL}, v{WW+r}')
    for r in range(4): a(f'  v_cvt_pk_bf16_f32 v{T+r}, v{T+r}, v{T+r}')
    for r in range(4):
        for q in range(4):
            a(f'  v_and_b32 v{AA+r*4+q}, v{T+r}, v{AM+q}')
    a('  s_barrier')
    for r in range(4): a(f'  ds_read_b128 v[{KR+r*4}:{KR+r*4+3}], v{AD+1} offset:{r*256}')
    a(f'  ds_read_b32 v{T}, v{BC}')
    for r in range(4):
        a(f'  s_waitcnt lgkmcnt({4-r})')
        a(f'  v_mfma_f32_16x16x32_bf16 v[{ACC}:{ACC+3}], v[{AA+r*4}:{AA+r*4+3}], v[{KR+r*4}:{KR+r*4+3}], v[{ACC}:{ACC+3}]')
    a('  s_waitcnt lgkmcnt(0)')
    a('  s_cmp_lt_u32 s52, s51\n  s_cbranch_scc1 L_V')
    a(f'  v_readfirstlane_b32 s45, v{T}')
    a(f'  v_add_f32 v{SQ}, v{DEN}, v{DEN+1}\n  v_add_f32 v{SQ+1}, v{DEN+2}, v{DEN+3}')
    a('  s_cmp_eq_u32 s45, s51\n  s_cbranch_scc0 L_K')
    a(f'  v_add_f32 v{SQ}, v{SQ}, v{SQ+1}')
    a(f'  ds_write_b128 v{EA}, v[{ACC}:{ACC+3}]')
    a(f'  ds_write_b32 v{EB}, v{SQ}')
    a('  s_waitcnt lgkmcnt(0)\n  s_barrier\n  s_endpgm')
    a('L_Q:')
    a(f'  v_mov_b32 v{PHIQ}, v{PK}\n  v_mov_b32 v{PHIQ+1}, v{PK+1}\n  s_lshl_b32 s50, s3, 10\n  s_branch L_K')
    a(f'''.section .rodata,"a"
.p2align 6
.amdhsa_kernel {NAME}
  .amdhsa_next_free_vgpr {acc_off+na}
  .amdhsa_next_free_sgpr 88
  .amdhsa_accum_offset {acc_off}
  .amdhsa_group_segment_fixed_size 0
  .amdhsa_kernarg_size 56
  .amdhsa_user_sgpr_count 2
  .amdhsa_user_sgpr_kernarg_segment_ptr 1
  .amdhsa_system_sgpr_workgroup_id_x 1
  .amdhsa_float_denorm_mode_32 3
.end_amdhsa_kernel
''')
    return '\n'.join(o)
if __name__=='__main__':
    import json
    kw = json.loads(sys.argv[1]) if len(sys.argv)>1 else {}
    print(gen(**kw))
```

```python
import sys
NAME='standalone__linear_kernel_rfa__decode_kernel'
HEAD='''; Kernarg layout for this problem (56 bytes, ptrs only, base s[0:1]):
'''
CTR=0x40000; CTRSTRIDE=4352; NONCE=0x7ff00
def gen(sizes=(2,1,1), win=20, LAG=6, stamps=False, pol='nt', CHK=30, initwg=0, ldpol='sc1', warm=True, outpol='',
        layout='wwgiiiiiigg', iperm=(0,1,2,3,4,5), gperm=(0,1,2), prio=3, padc=0, mimic=True, trace=False, tail=False, aux=0, touch=False, gap=1, warm2=False, stfirst=False, N0=None, cap0=32, hmix=0, fin=0, own=False, gapn=0, wgmap=None, rq=None):
    o=[]; a=o.append
    nwg=256
    sizes=list(sizes); S=64-sum(sizes); R=len(sizes)
    szp=0; pre=0; prep=0
    for r,s in enumerate(sizes): szp|=s<<(4*r); prep|=pre<<(4*r); pre+=s
    P=lambda c:[p+12 for p,ch in enumerate(layout) if ch==c]
    wpos,gpos,ipos=P('w'),P('g'),P('i')
    assert len(layout)==11 and len(wpos)==2 and len(gpos)==3 and len(ipos)==6
    toff=[((t&1)<<wpos[0])|((t>>1)<<wpos[1]) for t in range(4)]
    import math
    lo=math.floor(win); kf=round((win-lo)*16)
    WL=[lo+(1 if ((n*kf)//16!=((n+1)*kf)//16) else 0) for n in range(16)]
    NSTAR=min(n for n in range(16) if n>=WL[n]-17)
    win=max(lo, 17+NSTAR) if kf else lo
    assert 0<=NSTAR<8 and 3<=LAG<=6 and LAG-1-gap>=2
    RING=0x20000; LW=RING; LRED=LW+16384; LDEN=LRED+4096; LCTL=LDEN+64; lds=LCTL+64
    def scatter(dst, base, src, pairs, tmp='s45'):
        runs=[]
        for k,p in pairs:
            if runs and runs[-1][1]+runs[-1][2]==p and runs[-1][0]+runs[-1][2]==k: runs[-1][2]+=1
            else: runs.append([k,p,1])
        for (k,p,n) in runs:
            a(f'  s_bfe_u32 {tmp}, {src}, {hex(k|(n<<16))}\n  s_lshl_b32 {tmp}, {tmp}, {p}\n  s_or_b32 {dst}, {base}, {tmp}'); base=dst
    VK=2
    VV=6
    DM=10; AM=14; ONE,NEGSEL=18,19; PHIQ=20; PK=22; T=24; KS=32; KR=48; PR=64; GR=68; SQ=72; WW=76; DEN=80; ACC=84; AA=88
    BK=104
    BV=108; BW=109; BC=110; EA=111; EB=112; AD=114
    RB0=116; nv=148 if fin>=3 else 118
    OM=0; na=16
    acc_off=(nv+3)//4*4
    a(HEAD+f'; @launch grid=({nwg},1,1) block=(320,1,1) lds={lds}')
    a('.amdgcn_target "amdgcn-amd-amdhsa--gfx950"\n.text')
    a(f'.globl {NAME}\n.p2align 8\n.type {NAME},@function\n{NAME}:')
    a('  s_load_dwordx2 s[8:9], s[0:1], 8')
    if aux: a('  s_load_dwordx2 s[20:21], s[0:1], 0\n  s_load_dwordx2 s[88:89], s[0:1], 24')
    a(f'  s_cmp_ge_u32 s2, {nwg}\n  s_cbranch_scc1 L_end')
    if stamps: a('  s_memrealtime s[70:71]')
    a('  v_lshrrev_b32 v1, 6, v0')
    a('  v_and_b32 v0, 63, v0')
    a('  v_readfirstlane_b32 s3, v1')
    a(f'  v_lshrrev_b32 v{T+1}, 4, v0')
    a(f'  v_xor_b32 v{VK}, v0, v{T+1}')
    a(f'  v_lshlrev_b32 v{VK}, 4, v{VK}')
    for p in range(1,4): a(f'  v_xor_b32 v{VK+p}, {p*1024+p*64}, v{VK}')
    if wgmap:
        scatter('s39','0','s2',list(zip(wgmap,range(8)))); a('  s_mov_b32 s2, s39')
    if hmix:
        a(f'  s_and_b32 s39, s2, 7\n  s_mul_i32 s39, s39, {hmix*8}\n  s_add_u32 s2, s2, s39\n  s_and_b32 s2, s2, 255')
    a('  s_lshr_b32 s39, s2, 3')
    a('  s_cmp_lg_u32 s3, 0\n  s_cbranch_scc1 L_cons')
    a(f'  s_setprio {prio}')
    a('  s_mov_b32 s10, 0x10000000\n  s_mov_b32 s11, 0x20000')
    a('  s_lshl_b32 s57, s39, 23')
    scatter('s37','s57','s2',list(zip(gperm,gpos)))
    a('  s_mov_b32 m0, 0\n  s_movk_i32 s56, 1024\n  s_mov_b64 vcc, 0')
    def addr():
        scatter('s16','s37','s38',list(zip(iperm,ipos)))
        for t in range(1,4): a(f'  s_add_u32 s{16+t}, s16, {toff[t]}')
        a('  s_add_u32 s38, s38, 1')
    lab=[0]
    def group(srd, vo, cond=False, extra=None, hooks={}):
        n=0
        if trace:
            lab[0]+=1
            a('  s_waitcnt lgkmcnt(0)\n  s_and_b32 s5, s4, 63\n  s_mov_b32 s6, m0\n  s_mov_b32 m0, s5')
            a(f'  s_cmp_lt_u32 s4, 64\n  s_cbranch_scc0 L_t{lab[0]}\n  v_writelane_b32 v96, s94, m0\n  s_branch L_u{lab[0]}')
            a(f'L_t{lab[0]}:\n  s_cmp_lt_u32 s4, 128\n  s_cbranch_scc0 L_w{lab[0]}\n  v_writelane_b32 v97, s94, m0\n  s_branch L_u{lab[0]}')
            a(f'L_w{lab[0]}:\n  v_writelane_b32 v98, s94, m0\nL_u{lab[0]}:\n  s_mov_b32 m0, s6\n  s_add_u32 s4, s4, 1\n  s_memrealtime s[94:95]')
        for p in range(4):
            for t in range(4):
                a(f'  s_waitcnt vmcnt({WL[n]-1})')
                if n==NSTAR:
                    if cond:
                        lab[0]+=1
                        a(f'  s_cbranch_vccz L_nb{lab[0]}\n  s_barrier\nL_nb{lab[0]}:')
                    else: a('  s_barrier')
                if extra and n==NSTAR+8:
                    lab[0]+=1
                    a(f'  s_cbranch_vccz L_nb{lab[0]}\n  s_barrier\nL_nb{lab[0]}:')
                a(f'  buffer_load_dwordx4 v{vo+p}, s[{srd}:{srd+3}], s{16+t} offen {pol} lds')
                a('  s_add_u32 m0, m0, s56')
                if n in hooks: hooks[n]()
                n+=1
        a(f'  s_and_b32 m0, m0, {RING-1}')
    A7=7*16384
    a('  s_mov_b32 s16, s37')
    for t in range(1,4): a(f'  s_add_u32 s{16+t}, s16, {toff[t]}')
    a('  s_lshl_b32 s44, s39, 8')
    if aux:
        a('  s_movk_i32 s90, 4096\n  s_mov_b32 s91, s11\n  s_movk_i32 s22, 8192\n  s_mov_b32 s23, s11')
        for p in range(4): a(f'  v_and_b32 v{VV+p}, 0xff, v{VK+p}')
    def auxld(p, back):
        a(f'  s_mov_b32 m0, {A7+p*4096}\n  s_nop 0\n  buffer_load_dwordx4 v{VK+p}, s[88:91], 0 offen lds')
        a(f'  s_add_u32 m0, m0, s56\n  s_nop 0\n  buffer_load_dwordx4 v{VV+p}, s[20:23], s44 offen lds')
        if back is not None: a(f'  s_mov_b32 m0, {back}\n  s_nop 0')
    a('  s_waitcnt lgkmcnt(0)')
    NP=N0 or win
    assert NP%16>NSTAR and NP//16<LAG-1-gap
    rowaddr=lambda r: sum(((r>>k)&1)<<p for k,p in zip(iperm,ipos))
    for n in range(NP):
        if n and n%16==0:
            for t in range(4): a(f'  s_add_u32 s{16+t}, s37, {rowaddr(n//16)+toff[t]}')
        a(f'  buffer_load_dwordx4 v{VK+(n%16)//4}, s[8:11], s{16+n%4} offen {pol} lds')
        if aux==1 and n==3: auxld(0, 4096); continue
        a('  s_add_u32 m0, m0, s56')
        if n+1>=cap0 and n+1<NP: a(f'  s_waitcnt vmcnt({cap0-1})')
        elif n%16!=15: a('  s_nop 0')
    if aux:
        for p in range(1 if aux==1 else 0,4): auxld(p, NP*1024 if p==3 else None)
    a(f'  s_mov_b32 s38, {NP//16+1}')
    if trace: a(f'  s_mov_b32 s4, {NP//16}\n  s_memrealtime s[94:95]\n  v_mov_b32 v96, 0\n  v_mov_b32 v97, 0\n  v_mov_b32 v98, 0')
    a('  s_load_dwordx2 s[12:13], s[0:1], 16')
    a('  s_load_dwordx2 s[24:25], s[0:1], 48')
    a('  s_load_dwordx2 s[28:29], s[0:1], 32')
    a('  s_load_dwordx2 s[32:33], s[0:1], 40')
    a('  s_mov_b32 s14, 0x10000000\n  s_mov_b32 s15, 0x20000')
    a('  s_mov_b32 s26, 0x100000\n  s_mov_b32 s27, 0x20000')
    a('  s_mov_b32 s30, 8192\n  s_mov_b32 s31, 0x20000')
    a(f'  v_lshlrev_b32 v{VV}, 4, v0')
    for p in range(1,4): a(f'  v_add_u32 v{VV+p}, {p*1024}, v{VV}')
    a(f'  v_lshlrev_b32 v{EA}, 3, v0\n  v_add_u32 v{EA}, {LRED}, v{EA}\n  v_mov_b32 v{EB}, {LDEN}\n  v_mov_b32 v{BC}, {LCTL}\n  v_lshlrev_b32 v{AD}, 2, v0')
    a(f'  v_mov_b32 v{AD+1}, 0\n  s_lshl_b32 s80, s2, 10')
    for k in range(1,8): a(f'  s_xor_b32 s{80+k}, s80, {k*1024}')
    a(f'  s_mov_b32 s66, {szp}\n  s_mov_b32 s67, {prep}')
    a(f'  s_mul_i32 s45, s39, {CTRSTRIDE}\n  s_add_u32 s45, s45, {CTR}')
    a(f'  s_add_u32 s61, s45, 4\n  s_mov_b32 s59, 0\n  s_mov_b32 s60, {S}\n  s_mov_b32 s53, 0\n  s_mov_b32 s7, 0')
    a('  s_waitcnt lgkmcnt(0)')
    a('  s_add_u32 s64, s24, s45\n  s_addc_u32 s65, s25, 0')
    a('  s_branch L_kin')
    hop=[0]
    def H(on=True):
        if warm and on:
            a(f'L_h{hop[0]}:\n  s_cbranch_execz L_h{hop[0]+1}'); hop[0]+=1
    def tiles():
        for t in range(1,4): a(f'  s_add_u32 s{16+t}, s16, {toff[t]}')
    def req(): a('  s_mov_b32 s58, 1\n  s_atomic_add s58, s[64:65], 0 glc')
    a('L_k:')
    addr()
    def khook():
        a(f'  s_cmp_eq_u32 s38, {CHK}\n  s_cbranch_scc1 L_ask')
        a(f'  s_cmp_eq_u32 s38, {CHK+2}\n  s_cbranch_scc1 L_got')
        a('L_kback:')
    hk={}
    def addhook(n,f):
        g=hk.get(n)
        hk[n]=(lambda: (g(), f())) if g else f
    addhook(NSTAR,khook)
    addhook(NP%16-1, lambda: a('L_kin:'))
    if rq is not None and R:
        def rqk():
            a('  s_cmp_eq_u32 s7, 0\n  s_cbranch_scc1 L_nq'); req(); a('  s_mov_b32 s7, 0\nL_nq:')
        addhook(rq, rqk)
    group(8, VK, cond=True, hooks=hk)
    a('  s_cmp_lg_u32 s53, 0\n  s_cbranch_scc1 L_dv')
    a(f'  s_cmp_ge_u32 s38, {LAG}\n  s_cselect_b64 vcc, -1, 0\n  s_cmp_eq_u32 s38, {LAG-1-gap}\n  s_cselect_b64 vcc, -1, vcc')
    a(f'  s_cmp_lt_u32 s38, {S}\n  s_cbranch_scc1 L_k')
    if stamps: a('  s_memrealtime s[68:69]')
    a('  s_mov_b32 s54, s16\n  s_mov_b32 s38, 0')
    a('L_v:')
    H(warm2)
    scatter('s16','s37','s38',list(zip(iperm,ipos)))
    a('  s_add_u32 s38, s38, 1')
    a(f'  s_sub_u32 s45, s38, {LAG+4}\n  s_cmp_lt_u32 s45, {LAG-2}\n  s_cselect_b64 vcc, -1, 0')
    if R:
        a(f'  s_cmp_eq_u32 s38, {S-2}\n  s_cbranch_scc0 L_v1'); req()
    a('L_v1:')
    H(warm2)
    tiles()
    group(12, VV, extra=True, hooks={n:(lambda: H(warm2)) for n in range(1,16,3)})
    a('  s_cmp_eq_u32 s53, 2\n  s_cbranch_scc1 L_fin')
    a(f'  s_cmp_lt_u32 s38, {S-1}\n  s_cbranch_scc1 L_v')
    H()
    if R:
        a('  s_mov_b32 s53, 1\n  s_mov_b64 vcc, -1')
        a('  s_cmp_lg_u32 s59, 0\n  s_cbranch_scc1 L_d2')
        a(f'  s_waitcnt lgkmcnt(0)\n  s_cmp_lt_u32 s58, {R*8}\n  s_cbranch_scc0 L_last')
        a('  s_lshr_b32 s45, s58, 3\n  s_lshl_b32 s45, s45, 2\n  s_lshr_b32 s59, s66, s45\n  s_and_b32 s59, s59, 15\n  s_lshr_b32 s38, s67, s45\n  s_and_b32 s38, s38, 15')
        a(f'  s_add_u32 s38, s38, {S}')
        H()
        scatter('s37','s57','s58',list(zip(gperm,gpos)))
        a('L_d2:')
        a('  s_add_u32 s60, s60, 1\n  s_sub_u32 s59, s59, 1\n  s_cmp_lg_u32 s59, 0\n  s_cbranch_scc1 L_k')
        if rq is None: req()
        else: a('  s_mov_b32 s7, 1')
        a('  s_branch L_k')
    a('L_last:')
    H()
    a(f'  v_mov_b32 v{T}, s60\n  ds_write_b32 v{BC}, v{T}\n  s_mov_b32 s53, 2\n  s_waitcnt lgkmcnt(0)')
    a('L_dv:')
    a('  s_mov_b32 s45, s16\n  s_mov_b32 s16, s54\n  s_mov_b32 s54, s45\n  s_mov_b64 vcc, 0\n  s_branch L_v1')
    a('L_fin:')
    X=KS; D=KR; R0=64; MY=28
    def pk(d,x,y): a(f'  v_pk_add_f32 v[{d}:{d+1}], v[{x}:{x+1}], v[{y}:{y+1}]')
    nt=0
    if touch:
        a(f'  s_mov_b32 s45, 0x90000\n  buffer_load_dword v{T+2}, v{AD+1}, s[24:27], s45 offen\n  buffer_load_dword v{T+3}, v{AD+1}, s[28:31], s44 offen'); nt=2
    H()
    a(f'  v_mov_b32 v{MY+3}, s62\n  v_mov_b32 v{T+1}, 1\n  s_mov_b32 s49, 0')
    if own:
        a(f'  buffer_load_dwordx4 v[{R0}:{R0+3}], v{VV}, s[24:27], s80 offen'); nt+=1
    if fin>=1:
        nt+=1
        a(f'  s_mov_b64 exec, 1\n  buffer_atomic_add v{T+1}, v{AD+1}, s[24:27], s61 offen sc0\n  s_mov_b64 exec, -1')
    a(f'  s_waitcnt vmcnt({16+nt})\n  s_barrier')
    a(f'  s_waitcnt vmcnt({nt})')
    if stamps: a('  s_memrealtime s[72:73]')
    if tail: a('  s_memtime s[4:5]')
    a('  s_barrier')
    if fin==0:
        a(f'  s_mov_b64 exec, 1\n  buffer_atomic_add v{T+1}, v{AD+1}, s[24:27], s61 offen sc0\n  s_mov_b64 exec, -1')
    H()
    for i in range(4): a(f'  ds_read_b128 v[{D+i*4}:{D+i*4+3}], v{EB} offset:{i*16}')
    a('  s_waitcnt lgkmcnt(0)')
    for i in range(4): pk(D+i*4, D+i*4, D+i*4+2)
    H()
    pk(D,D,D+4); pk(D+8,D+8,D+12); pk(D,D,D+8)
    a(f'  v_add_f32 v{MY+2}, v{D}, v{D+1}')
    H()
    def poll(base=64):
        for k in range(1,8):
            a(f'  buffer_load_dwordx4 v[{base+k*4}:{base+k*4+3}], v{VV}, s[24:27], s{80+k} offen {ldpol}')
    if fin>=1: a(f'  s_waitcnt vmcnt(0)\n  v_readfirstlane_b32 s55, v{T+1}\n  s_nop 0\n  s_cmp_eq_u32 s55, 7')
    a('  s_barrier')
    if fin in (2,3):
        a('  s_cbranch_scc0 L_np'); poll(); a('L_np:'); H()
    if tail: a('  s_memtime s[90:91]')
    for i in range(8): a(f'  ds_read_b64 v[{X+i*2}:{X+i*2+1}], v{EA} offset:{i*512}')
    H()
    for i in range(4):
        a(f'  s_waitcnt lgkmcnt({0 if tail else 6-2*i})')
        pk(X+i*4, X+i*4, X+i*4+2)
        if i==1: pk(X,X,X+4)
    pk(X+8,X+8,X+12)
    pk(MY,X,X+8)
    if tail: a('  s_memtime s[92:93]')
    if fin==0:
        if stfirst:
            a(f'  buffer_store_dwordx4 v[{MY}:{MY+3}], v{VV}, s[24:27], s80 offen sc1')
            H(); poll()
        else:
            poll(); H()
            a(f'  buffer_store_dwordx4 v[{MY}:{MY+3}], v{VV}, s[24:27], s80 offen sc1')
        H()
        a(f'  s_waitcnt vmcnt(8)\n  v_readfirstlane_b32 s55, v{T+1}\n  s_nop 0')
        if stamps: a('  s_cmp_eq_u32 s55, 7\n  s_cbranch_scc1 L_el\n  s_mov_b64 s[78:79], 0\n  s_waitcnt vmcnt(0)\n  s_memrealtime s[74:75]\n  s_branch L_stamp\nL_el:\n  s_mov_b64 s[74:75], 0')
        else: a('  s_cmp_lg_u32 s55, 7\n  s_cbranch_scc1 L_end')
        a(f'  s_waitcnt vmcnt({0 if stfirst else 1})')
    else:
        a('  s_cbranch_scc1 L_el2')
        a(f'  buffer_store_dwordx4 v[{MY}:{MY+3}], v{VV}, s[24:27], s80 offen sc1')
        if stamps: a('  s_mov_b64 s[78:79], 0\n  s_waitcnt vmcnt(0)\n  s_memrealtime s[74:75]\n  s_branch L_stamp')
        else: a('  s_endpgm')
        a('L_el2:')
        H()
        if stamps: a('  s_mov_b64 s[74:75], 0')
        if fin in (1,4): poll()
        H()
        if fin>=3:
            for i in range(gapn): a('  s_nop 15')
            poll(RB0); H()
        else: a('  s_waitcnt vmcnt(0)')
    def check(base, dst):
        a(f'  v_xor_b32 v{T}, v{MY+3}, v{base+7}')
        for k in range(2,8):
            a(f'  v_bitop3_b32 v{T}, v{T}, v{base+k*4+3}, v{MY+3} bitop3:0xf6')
        H()
        a(f'  v_cmp_ne_u32 vcc, 0, v{T}')
        pk(dst, MY, base+4); a(f'  v_add_f32 v{dst+2}, v{MY+2}, v{base+6}')
        for i in range(1,4):
            pk(dst+i*8, base+i*8, base+i*8+4); a(f'  v_add_f32 v{dst+i*8+2}, v{base+i*8+2}, v{base+i*8+6}')
    a('L_chk:')
    if fin>=3:
        R0=32
        a('  s_waitcnt vmcnt(7)')
        if tail: a('  s_memtime s[94:95]')
        check(64,R0)
        a('  s_cbranch_vccz L_out')
        H(); poll(64); H()
        a('  s_waitcnt vmcnt(7)\n  s_add_u32 s49, s49, 1')
        check(RB0,R0)
        a('  s_cbranch_vccnz L_again')
    else:
        if tail: a('  s_memtime s[94:95]')
        check(64,R0)
        a('  s_cbranch_vccnz L_again')
    a('L_out:')
    H()
    a(f'  v_add_f32 v{R0+2}, v{R0+2}, v{R0+10}\n  v_add_f32 v{R0+18}, v{R0+18}, v{R0+26}')
    pk(R0, R0, R0+8)
    a(f'  v_add_f32 v{R0+2}, v{R0+2}, v{R0+18}')
    pk(R0+16, R0+16, R0+24)
    a(f'  v_add_f32 v{R0+2}, 0x358637bd, v{R0+2}')
    a(f'  v_rcp_f32 v{R0+3}, v{R0+2}')
    pk(R0,R0,R0+16)
    H()
    for r in range(2): a(f'  v_mul_f32 v{R0+4+r}, v{R0+r}, v{R0+3}')
    for r in range(2): a(f'  v_fma_f32 v{R0+6+r}, -v{R0+4+r}, v{R0+2}, v{R0+r}')
    for r in range(2): a(f'  v_fma_f32 v{R0+4+r}, v{R0+6+r}, v{R0+3}, v{R0+4+r}')
    a(f'  v_cvt_pk_bf16_f32 v{R0}, v{R0+4}, v{R0+5}')
    if warm: a(f'L_h{hop[0]}:\n  s_cbranch_execz L_hret')
    a(f'  buffer_store_dword v{R0}, v{AD}, s[28:31], s44 offen {outpol}')
    if stamps:
        if tail: a('  s_memtime s[96:97]')
        a('  s_waitcnt vmcnt(0)\n  s_memrealtime s[78:79]')
        if tail:
            a('  s_memtime s[98:99]\n  s_waitcnt lgkmcnt(0)')
            for i in range(5): a(f'  s_sub_u32 s{90+2*i}, s{90+2*i}, s4\n  v_mov_b32 v{KR+i}, s{90+2*i}')
            a(f'  s_lshl_b32 s47, s39, 5\n  s_add_u32 s47, s47, 0xa0000\n  v_mov_b32 v{T}, 0')
            a(f'  buffer_store_dwordx4 v[{KR}:{KR+3}], v{T}, s[24:27], s47 offen\n  buffer_store_dword v{KR+4}, v{T}, s[24:27], s47 offen offset:16')
        a('L_stamp:\n  s_getreg_b32 s77, hwreg(HW_REG_XCC_ID)\n  s_waitcnt lgkmcnt(0)')
        a(f'  v_mov_b32 v{KS}, s70\n  v_mov_b32 v{KS+1}, s71\n  v_mov_b32 v{KS+2}, s72\n  v_mov_b32 v{KS+3}, s73')
        a(f'  v_mov_b32 v{KS+4}, s74\n  v_mov_b32 v{KS+5}, s75\n  v_mov_b32 v{KS+6}, s77\n  v_mov_b32 v{KS+7}, s60')
        a(f'  v_mov_b32 v{KS+8}, s78\n  v_mov_b32 v{KS+9}, s79\n  v_mov_b32 v{KS+10}, s49\n  v_mov_b32 v{KS+11}, 0')
        a(f'  v_mov_b32 v{KS+12}, s68\n  v_mov_b32 v{KS+13}, s69')
        if trace:
            a(f'  s_lshl_b32 s47, s2, 10\n  s_add_u32 s47, s47, 0xc0000')
            for i in range(3): a(f'  buffer_store_dword v{96+i}, v{AD}, s[24:27], s47 offen offset:{256*i}')
        a(f'  s_lshl_b32 s47, s2, 6\n  s_add_u32 s47, s47, 0x80000\n  v_mov_b32 v{T}, 0\n  s_mov_b64 exec, 1')
        for i in range(4): a(f'  buffer_store_dwordx4 v[{KS+4*i}:{KS+4*i+3}], v{T}, s[24:27], s47 offen offset:{16*i}')
    a('L_end:\n  s_endpgm')
    a('L_again:')
    poll(RB0 if fin>=3 else 64)
    a('  s_add_u32 s49, s49, 1\n  s_cmp_lt_u32 s49, 0x100000')
    if fin<3: a('  s_waitcnt vmcnt(0)')
    a('  s_cbranch_scc1 L_chk\n  s_endpgm')
    a('L_ask:\n  s_load_dwordx2 s[62:63], s[32:33], 8\n  s_branch L_kback')
    a('L_got:\n  s_waitcnt lgkmcnt(0)\n  s_cmp_eq_u32 s63, 1\n  s_cbranch_scc1 L_kback')
    a('  s_call_b64 s[46:47], L_init')
    a('  s_mov_b32 s45, 0x100000')
    a('L_sp:\n  s_mov_b64 s[62:63], 0\n  s_atomic_add_x2 s[62:63], s[32:33], 8 glc\n  s_waitcnt lgkmcnt(0)')
    a('  s_cmp_eq_u32 s63, 1\n  s_cbranch_scc1 L_kback\n  s_sub_u32 s45, s45, 1\n  s_cbranch_scc0 L_sp\n  s_branch L_kback')
    a('L_init:')
    a('  s_mov_b32 s45, 1\n  s_atomic_add s45, s[32:33], 0 glc\n  s_waitcnt lgkmcnt(0)')
    a('  s_cmp_eq_u32 s45, 0\n  s_cbranch_scc0 L_iret')
    a(f'  s_mov_b32 s45, 1\n  s_mov_b32 s50, {NONCE}\n  s_atomic_add s45, s[24:25], s50 glc')
    a(f'  s_movk_i32 s48, {CTRSTRIDE}\n  v_mul_lo_u32 v{KS+2}, v0, s48\n  v_mov_b32 v{KS}, 0\n  v_mov_b32 v{KS+1}, 0\n  s_mov_b32 s48, {CTR}')
    a(f'  s_mov_b32 exec_hi, 0\n  buffer_store_dwordx2 v[{KS}:{KS+1}], v{KS+2}, s[24:27], s48 offen sc1\n  s_mov_b32 exec_hi, -1')
    a('  s_waitcnt vmcnt(0) lgkmcnt(0)')
    a('  s_add_u32 s48, s45, 1\n  s_mov_b32 s49, 1\n  s_atomic_swap_x2 s[48:49], s[32:33], 8')
    a('L_iret:')
    a('  s_setpc_b64 s[46:47]')
    a('L_cons:')
    a('  s_sub_u32 s3, s3, 1')
    if not aux:
        a('  s_load_dwordx2 s[16:17], s[0:1], 24')
        a('  s_load_dwordx2 s[20:21], s[0:1], 0')
    a('  s_load_dwordx2 s[24:25], s[0:1], 48')
    a('  s_load_dwordx2 s[32:33], s[0:1], 40')
    a('  s_mov_b32 s18, 4096\n  s_mov_b32 s19, 0x20000')
    a('  s_mov_b32 s22, 8192\n  s_mov_b32 s23, 0x20000')
    a('  s_mov_b32 s26, 0x100000\n  s_mov_b32 s27, 0x20000')
    a('  s_mov_b32 s40, 0x3e9837f0\n  s_mov_b32 s41, 0x3e9837f0\n  s_mov_b32 s42, 0x3fb8aa3b\n  s_mov_b32 s43, 0xffff0000')
    a('  s_lshl_b32 s44, s39, 8')
    a(f'  v_and_b32 v{T}, 15, v0')
    a(f'  v_lshlrev_b32 v{T+2}, 2, v{T+1}')
    a(f'  v_sub_u32 v{T+2}, v{T}, v{T+2}')
    for r in range(4):
        a(f'  v_cmp_eq_u32 vcc, {r}, v{T+2}\n  s_nop 1\n  v_cndmask_b32 v{DM+r}, 0, -1, vcc')
    a(f'  v_and_b32 v{T+3}, 1, v{T}')
    a(f'  v_cmp_eq_u32 vcc, 1, v{T+3}\n  v_mov_b32 v{T+4}, 0xffff\n  v_mov_b32 v{T+5}, s43\n  v_cndmask_b32 v{T+4}, v{T+4}, v{T+5}, vcc')
    a(f'  v_bfe_u32 v{T+3}, v{T}, 1, 2')
    for q in range(4):
        a(f'  v_cmp_eq_u32 vcc, {q}, v{T+3}\n  s_nop 1\n  v_cndmask_b32 v{AM+q}, 0, v{T+4}, vcc')
    a(f'  v_mov_b32 v{ONE}, 1.0')
    a(f'  v_cmp_lt_u32 vcc, 7, v{T}\n  s_nop 1\n  v_cndmask_b32 v{NEGSEL}, 0, -1.0, vcc')
    for r in range(4):
        a(f'  v_mov_b32 v{DEN+r}, 0\n  v_mov_b32 v{ACC+r}, 0')
    a(f'  v_lshrrev_b32 v{T+2}, 2, v{T}\n  v_lshlrev_b32 v{BK}, 12, v{T+2}\n  v_and_b32 v{T+2}, 3, v{T}\n  v_lshl_add_u32 v{BK}, v{T+2}, 8, v{BK}')
    a(f'  v_xor_b32 v{T+2}, v{T}, v{T+1}\n  v_lshl_add_u32 v{BK}, v{T+2}, 4, v{BK}')
    for j in range(1,4): a(f'  v_xor_b32 v{BK+j}, {j*64}, v{BK}')
    a(f'  v_lshlrev_b32 v{BV}, 12, v{T+1}\n  v_lshl_add_u32 v{BV}, v{T}, 4, v{BV}')
    a(f'  s_lshl_b32 s45, s3, 6\n  s_add_u32 s45, s45, {LW}\n  v_lshl_add_u32 v{BW}, v{T+1}, 4, s45')
    a(f'  v_mov_b32 v{BC}, {LCTL}')
    a(f'  v_lshlrev_b32 v{EA}, 5, v{T}\n  v_and_b32 v{T+2}, 1, v{T+1}\n  v_lshl_add_u32 v{EA}, v{T+2}, 4, v{EA}')
    a(f'  v_lshrrev_b32 v{T+2}, 5, v0\n  s_lshl_b32 s45, s3, 1\n  v_add_lshl_u32 v{T+2}, v{T+2}, s45, 9\n  v_add_u32 v{EA}, v{EA}, v{T+2}\n  v_add_u32 v{EA}, {LRED}, v{EA}')
    a(f'  s_lshl_b32 s45, s3, 2\n  v_add_lshl_u32 v{EB}, v{T+1}, s45, 2\n  v_add_u32 v{EB}, {LDEN}, v{EB}')
    a('  s_waitcnt lgkmcnt(0)')
    a('  s_cmp_eq_u32 s3, 0\n  s_cbranch_scc0 L_c1')
    if not aux:
        for p in range(4):
            a(f'  s_mov_b32 m0, {A7+p*4096}\n  s_nop 0\n  buffer_load_dwordx4 v{VK+p}, s[16:19], 0 offen lds')
    a('  s_branch L_c3')
    a('L_c1:\n  s_cmp_eq_u32 s3, 1\n  s_cbranch_scc0 L_c2')
    if not aux:
        for p in range(4):
            a(f'  s_mov_b32 m0, {A7+p*4096+1024}\n  v_and_b32 v{VK+p}, 0xff, v{VK+p}\n  buffer_load_dwordx4 v{VK+p}, s[20:23], s44 offen lds')
    a('  s_branch L_c3')
    a('L_c2:\n  s_cmp_eq_u32 s3, 2\n  s_cbranch_scc0 L_c4')
    a(f'  ds_write_b32 v{BC}, v{DEN}')
    a(f'  s_cmp_eq_u32 s2, {initwg}\n  s_cbranch_scc0 L_c3')
    a('  s_call_b64 s[46:47], L_init')
    a('  s_branch L_c3')
    a('L_c4:')
    if warm: a('  s_mov_b64 exec, 0\n  s_branch L_h0\nL_hret:\n  s_mov_b64 exec, -1')
    a('L_c3:')
    a(f'  s_mov_b32 s50, {A7+1024}\n  s_mov_b32 s51, -1\n  s_mov_b32 s52, 0')
    for j in range(4): a(f'  v_add_u32 v{AD+j}, {A7}, v{BK+j}')
    a('  s_waitcnt vmcnt(0) lgkmcnt(0)\n  s_barrier')
    for j in range(4): a(f'  ds_read_b128 a[{OM+j*4}:{OM+j*4+3}], v{AD+j}')
    for j in range(4): a(f'  v_add_u32 v{AD+j}, s50, v{BK+j}')
    a('  s_waitcnt lgkmcnt(0)')
    a('  s_branch L_K1')
    a('.p2align 6')
    for i in range(padc): a('  s_nop 0')
    a('L_K:')
    for j in range(4): a(f'  v_add_u32 v{AD+j}, s50, v{BK+j}')
    a('  s_barrier')
    a('L_K1:')
    for j in range(4): a(f'  ds_read_b128 v[{KR+j*4}:{KR+j*4+3}], v{AD+j}')
    a(f'  s_add_u32 s50, s50, 0x4000\n  s_and_b32 s50, s50, {RING-1}')
    a(f'  s_and_b32 s45, s51, 63\n  s_lshl_b32 s45, s45, 8\n  v_add_u32 v{AD}, s45, v{BW}')
    src=KR
    for j in range(4):
        a(f'  s_waitcnt lgkmcnt({3-j})')
        for d in range(4):
            x=src+j*4+d; t=T+2*d
            a(f'  v_lshlrev_b32 v{t}, 16, v{x}')
            a(f'  v_and_b32 v{t+1}, s43, v{x}')
        for d in range(4):
            t=T+2*d
            a(f'  v_pk_mul_f32 v[{t}:{t+1}], v[{t}:{t+1}], s[40:41]')
        for d in range(4):
            t=T+2*d
            a(f'  v_cvt_pk_bf16_f32 v{KS+j*4+d}, v{t}, v{t+1}')
        if j>0:
            jj=j-1; k=KS+jj*4
            a(f'  v_mfma_f32_16x16x32_bf16 v[{GR}:{GR+3}], v[{k}:{k+3}], v[{k}:{k+3}], '+('0' if jj==0 else f'v[{GR}:{GR+3}]'))
            a(f'  v_mfma_f32_16x16x32_bf16 v[{PR}:{PR+3}], a[{OM+jj*4}:{OM+jj*4+3}], v[{k}:{k+3}], '+('0' if jj==0 else f'v[{PR}:{PR+3}]'))
    k=KS+12
    a(f'  v_mfma_f32_16x16x32_bf16 v[{GR}:{GR+3}], v[{k}:{k+3}], v[{k}:{k+3}], v[{GR}:{GR+3}]')
    a(f'  v_mfma_f32_16x16x32_bf16 v[{PR}:{PR+3}], a[{OM+12}:{OM+15}], v[{k}:{k+3}], v[{PR}:{PR+3}]')
    a('  s_nop 6')
    a(f'  v_and_b32 v{T}, v{GR}, v{DM}')
    a(f'  v_and_or_b32 v{T}, v{GR+1}, v{DM+1}, v{T}')
    a(f'  v_and_or_b32 v{T}, v{GR+2}, v{DM+2}, v{T}')
    a(f'  v_and_or_b32 v{T}, v{GR+3}, v{DM+3}, v{T}')
    a(f'  v_cvt_pk_bf16_f32 v{PR}, 0, v{PR}')
    a(f'  v_cvt_pk_bf16_f32 v{PR+1}, 0, v{PR+1}')
    a(f'  v_mfma_f32_16x16x4_f32 v[{SQ}:{SQ+3}], v{ONE}, v{T}, 0')
    a(f'  v_cvt_pk_bf16_f32 v{PR+2}, 0, v{PR+2}')
    a(f'  v_cvt_pk_bf16_f32 v{PR+3}, 0, v{PR+3}')
    a('  s_nop 7')
    a(f'  v_cvt_pk_bf16_f32 v{T}, 0, v{SQ}')
    for r in range(4): a(f'  v_fma_f32 v{PR+r}, v{T}, -0.5, v{PR+r}')
    for r in range(4): a(f'  v_cvt_pk_bf16_f32 v{PR+r}, 0, v{PR+r}')
    for r in range(4): a(f'  v_fma_f32 v{PR+r}, v{PR+r}, s42, -2.0')
    for r in range(4): a(f'  v_exp_f32 v{PR+r}, v{PR+r}')
    a('  s_add_u32 s51, s51, 1')
    for r in range(4): a(f'  v_cvt_pk_bf16_f32 v{PR+r}, 0, v{PR+r}')
    for r in range(4): a(f'  v_add_f32 v{PR+r}, 0x358637bd, v{PR+r}')
    a(f'  v_cvt_pk_bf16_f32 v{PK}, v{PR}, v{PR+1}')
    a(f'  v_cvt_pk_bf16_f32 v{PK+1}, v{PR+2}, v{PR+3}')
    a('  s_cmp_eq_u32 s51, 0\n  s_cbranch_scc1 L_Q')
    a(f'  v_mfma_f32_16x16x16_bf16 v[{WW}:{WW+3}], v[{PK}:{PK+1}], v[{PHIQ}:{PHIQ+1}], 0')
    a(f'  v_mfma_f32_16x16x16_bf16 v[{DEN}:{DEN+3}], v[{PK}:{PK+1}], v[{PHIQ}:{PHIQ+1}], v[{DEN}:{DEN+3}]')
    a(f'  s_cmp_lt_u32 s51, {S}')
    a('  s_nop 5')
    a(f'  ds_write_b128 v{AD}, v[{WW}:{WW+3}]')
    a('  s_cbranch_scc1 L_K')
    a('L_V:')
    a(f'  s_and_b32 s45, s52, 63\n  s_lshl_b32 s45, s45, 8\n  v_add_u32 v{AD}, s45, v{BW}')
    a(f'  ds_read_b128 v[{WW}:{WW+3}], v{AD}')
    a(f'  v_add_u32 v{AD+1}, s50, v{BV}')
    a(f'  s_add_u32 s50, s50, 0x4000\n  s_and_b32 s50, s50, {RING-1}\n  s_add_u32 s52, s52, 1')
    a('  s_waitcnt lgkmcnt(0)')
    for r in range(4): a(f'  v_cvt_pk_bf16_f32 v{T+r}, 0, v{WW+r}')
    for r in range(4): a(f'  v_fma_f32 v{T+r}, v{T+r}, v{NEGSEL}, v{WW+r}')
    for r in range(4): a(f'  v_cvt_pk_bf16_f32 v{T+r}, v{T+r}, v{T+r}')
    for r in range(4):
        for q in range(4):
            a(f'  v_and_b32 v{AA+r*4+q}, v{T+r}, v{AM+q}')
    a('  s_barrier')
    for r in range(4): a(f'  ds_read_b128 v[{KR+r*4}:{KR+r*4+3}], v{AD+1} offset:{r*256}')
    a(f'  ds_read_b32 v{T}, v{BC}')
    for r in range(4):
        a(f'  s_waitcnt lgkmcnt({4-r})')
        a(f'  v_mfma_f32_16x16x32_bf16 v[{ACC}:{ACC+3}], v[{AA+r*4}:{AA+r*4+3}], v[{KR+r*4}:{KR+r*4+3}], v[{ACC}:{ACC+3}]')
    a('  s_waitcnt lgkmcnt(0)')
    a('  s_cmp_eq_u32 s52, s51\n  s_cbranch_scc1 L_E')
    a(f'  v_readfirstlane_b32 s46, v{T}')
    a('  s_add_u32 s45, s52, 1\n  s_cmp_lt_u32 s45, s51\n  s_cbranch_scc1 L_V')
    a('  s_cmp_eq_u32 s46, s51\n  s_cbranch_scc0 L_K')
    a(f'  v_add_f32 v{SQ}, v{DEN}, v{DEN+1}\n  v_add_f32 v{SQ+1}, v{DEN+2}, v{DEN+3}')
    a(f'  v_add_f32 v{SQ}, v{SQ}, v{SQ+1}')
    a(f'  ds_write_b32 v{EB}, v{SQ}')
    a('  s_branch L_V')
    a('L_E:')
    a('  s_nop 4')
    a(f'  ds_write_b128 v{EA}, v[{ACC}:{ACC+3}]')
    a('  s_waitcnt lgkmcnt(0)\n  s_barrier\n  s_endpgm')
    a('L_Q:')
    a(f'  v_mov_b32 v{PHIQ}, v{PK}\n  v_mov_b32 v{PHIQ+1}, v{PK+1}\n  s_lshl_b32 s50, s3, 10\n  s_branch L_K')
    a(f'''.section .rodata,"a"
.p2align 6
.amdhsa_kernel {NAME}
  .amdhsa_next_free_vgpr {acc_off+na}
  .amdhsa_next_free_sgpr {100 if (trace or tail) else 92}
  .amdhsa_accum_offset {acc_off}
  .amdhsa_group_segment_fixed_size 0
  .amdhsa_kernarg_size 56
  .amdhsa_user_sgpr_count 2
  .amdhsa_user_sgpr_kernarg_segment_ptr 1
  .amdhsa_system_sgpr_workgroup_id_x 1
  .amdhsa_float_denorm_mode_32 3
.end_amdhsa_kernel
''')
    return '\n'.join(o)
if __name__=='__main__':
    import json
    kw = json.loads(sys.argv[1]) if len(sys.argv)>1 else {}
    print(gen(**kw))
```

```python
import sys
NAME='standalone__linear_kernel_rfa__decode_kernel'
HEAD='''; Kernarg layout for this problem (56 bytes, ptrs only, base s[0:1]):
'''
DOC='''
;
'''
CTR=0x40000; CTRSTRIDE=4352; NONCE=0x7ff00
def gen(sizes=(2,1,1), win=21, LAG=6, gap=1, stamps=False, CHK=24, initwg=0, warm=1, own=True, al=12, fill=0,
        prio=3, trace=False, tail=False, head=False, padk=0):
    o=[]; a=o.append
    nwg=256; pol='nt'
    sizes=list(sizes); S=64-sum(sizes); R=len(sizes)
    szp=0; pre=0; prep=0
    for r,s in enumerate(sizes): szp|=s<<(4*r); prep|=pre<<(4*r); pre+=s
    NSTAR=win-17
    assert 0<=NSTAR<8 and 3<=LAG<=6 and LAG-1-gap>=1 and R>=1 and 2*LAG+2<CHK<S-6
    RING=0x20000; LW=RING; LRED=LW+16384; LDEN=LRED+4096; LCTL=LDEN+64; lds=LCTL+64
    A7=7*16384
    VK=2; VV=6
    DM=10; AM=14; ONE,NEGSEL=18,19; PHIQ=20; PK=22; T=24; KS=32; KR=48; PR=64; GR=68; SQ=72; WW=76; DEN=80; ACC=84; AA=88
    BK=104; BV=108; BW=109; BC=110; EA=111; EB=112; AD=114
    nv=118; OM=0; na=16
    acc_off=(nv+3)//4*4
    chains={'h':[0],'g':[0]}
    def H(level=1, ch='h'):
        if warm>=level:
            n=chains[ch][0]; a(f'L_{ch}{n}:\n  s_cbranch_execz L_{ch}{n+1}'); chains[ch][0]+=1
    def Hend(ch, level=1):
        if warm>=level: a(f'L_{ch}{chains[ch][0]}:\n  s_cbranch_execz L_{ch}ret')
    a(HEAD+f'; @launch grid=({nwg},1,1) block=(320,1,1) lds={lds}'+DOC.rstrip())
    a('.amdgcn_target "amdgcn-amd-amdhsa--gfx950"\n.text')
    if al: a(f'.p2align {al}')
    if fill: a(f'.fill {fill//4}, 4, 0xbf810000')
    a(f'.globl {NAME}\n.p2align 8\n.type {NAME},@function\n{NAME}:')
    a('  s_load_dwordx2 s[8:9], s[0:1], 8           ; k')
    a('  s_load_dwordx8 s[72:79], s[0:1], 16')
    a('  s_load_dwordx2 s[24:25], s[0:1], 48        ; ws')
    a(f'  s_cmpk_ge_u32 s2, {nwg}\n  s_cbranch_scc1 L_end')
    if stamps: a('  s_memrealtime s[70:71]')
    if head: a('  s_memtime s[4:5]')
    a('  v_lshrrev_b32 v1, 6, v0')
    a('  v_and_b32 v0, 63, v0')
    a('  v_readfirstlane_b32 s3, v1')
    a(f'  v_lshrrev_b32 v{T+1}, 4, v0')
    a(f'  v_xor_b32 v{VK}, v0, v{T+1}')
    a(f'  v_lshlrev_b32 v{VK}, 4, v{VK}')
    for p in range(1,4): a(f'  v_xor_b32 v{VK+p}, {p*1024+p*64}, v{VK}')
    a('  s_lshr_b32 s39, s2, 2\n  s_xor_b32 s39, s39, s2\n  s_and_b32 s39, s39, 2\n  s_mul_i32 s39, s39, 5\n  s_xor_b32 s2, s2, s39')
    a('  s_lshr_b32 s39, s2, 3                      ; head')
    a('  s_mov_b32 s11, 0x20000')
    a('  s_cmp_lg_u32 s3, 0\n  s_cbranch_scc1 L_cons')
    a(f'  s_setprio {prio}')
    a('  s_brev_b32 s10, 8                          ; 0x10000000 bytes')
    a('  s_lshr_b32 s37, s2, 1\n  s_lshl_b32 s37, s37, 21\n  s_and_b32 s45, s2, 1\n  s_lshl_b32 s45, s45, 14\n  s_or_b32 s37, s37, s45')
    a('  s_mov_b32 m0, 0\n  s_movk_i32 s56, 4096\n  s_movk_i32 s36, 3072\n  s_mov_b64 vcc, 0\n  s_mov_b32 s38, 0\n  s_mov_b32 s53, 0')
    if trace: a('  s_mov_b32 s4, 0\n  s_mov_b32 s94, 0\n  v_mov_b32 v96, 0\n  v_mov_b32 v97, 0\n  v_mov_b32 v98, 0')
    def rowaddr():
        a('  s_and_b32 s16, s38, 3\n  s_and_b32 s17, s38, 12\n  s_lshr_b32 s18, s38, 4\n  s_lshl2_add_u32 s16, s17, s16\n  s_lshl2_add_u32 s16, s18, s16')
        a('  s_lshl_b32 s16, s16, 15\n  s_add_u32 s16, s16, s37\n  s_add_u32 s38, s38, 1')
    def tiles(): a('  s_add_u32 s17, s16, s36\n  s_add_u32 s18, s17, s36\n  s_add_u32 s19, s18, s36')
    lab=[0]
    def group(srd, vo, cond=False, extra=False, hooks={}):
        if trace:
            lab[0]+=1
            a('  s_waitcnt lgkmcnt(0)\n  s_and_b32 s5, s4, 63\n  s_mov_b32 s6, m0\n  s_mov_b32 m0, s5')
            a(f'  s_cmp_lt_u32 s4, 64\n  s_cbranch_scc0 L_t{lab[0]}\n  v_writelane_b32 v96, s94, m0\n  s_branch L_u{lab[0]}')
            a(f'L_t{lab[0]}:\n  s_cmp_lt_u32 s4, 128\n  s_cbranch_scc0 L_w{lab[0]}\n  v_writelane_b32 v97, s94, m0\n  s_branch L_u{lab[0]}')
            a(f'L_w{lab[0]}:\n  v_writelane_b32 v98, s94, m0\nL_u{lab[0]}:\n  s_mov_b32 m0, s6\n  s_add_u32 s4, s4, 1\n  s_memrealtime s[94:95]')
        for n in range(16):
            p,t=divmod(n,4)
            a(f'  s_waitcnt vmcnt({win-1})')
            if (n==NSTAR and cond) or (extra and n==NSTAR+8):
                lab[0]+=1
                a(f'  s_cbranch_vccz L_nb{lab[0]}\n  s_barrier\nL_nb{lab[0]}:')
            elif n==NSTAR: a('  s_barrier')
            a(f'  buffer_load_dwordx4 v{vo+p}, s[{srd}:{srd+3}], s{16+t} offen offset:{t*1024} {pol} lds')
            if t==3: a('  s_add_u32 m0, m0, s56')
            if n in hooks: hooks[n]()
        a('  s_bitset0_b32 m0, 17')
    def req(): a('  s_mov_b32 s58, 1\n  s_atomic_add s58, s[64:65], 0 glc')
    if head: a('  s_memtime s[90:91]')
    a('  s_waitcnt lgkmcnt(0)')
    if head: a('  s_memtime s[92:93]')
    a('L_k:')
    rowaddr(); tiles()
    group(8, VK, cond=True)
    if head: a('  s_cmp_eq_u32 s38, 1\n  s_cbranch_scc0 L_x1\n  s_memtime s[94:95]\nL_x1:\n  s_cmp_eq_u32 s38, 2\n  s_cbranch_scc0 L_x2\n  s_memtime s[96:97]\nL_x2:\n  s_cmp_eq_u32 s38, 8\n  s_cbranch_scc0 L_x3\n  s_memtime s[98:99]\nL_x3:')
    a('  s_cmp_lg_u32 s53, 0\n  s_cbranch_scc1 L_dv')
    a(f'  s_cmp_ge_u32 s38, {LAG}\n  s_cselect_b64 vcc, -1, 0\n  s_cmp_eq_u32 s38, {LAG-1-gap}\n  s_cselect_b64 vcc, -1, vcc')
    a(f'  s_cmp_lt_u32 s38, {S}\n  s_cbranch_scc1 L_k')
    if stamps: a('  s_memrealtime s[68:69]')
    H(2)
    a('  s_mov_b64 s[12:13], s[72:73]\n  s_mov_b64 s[14:15], s[10:11]')
    a(f'  v_lshlrev_b32 v{VV}, 4, v0')
    for p in range(1,4): a(f'  v_add_u32 v{VV+p}, {p*1024}, v{VV}')
    a('  s_mov_b32 s54, s16\n  s_mov_b32 s38, 0')
    a('  s_mov_b32 s26, 0x100000\n  s_mov_b32 s27, s11')
    a(f'  s_mul_i32 s61, s39, {CTRSTRIDE}\n  s_add_u32 s61, s61, {CTR}\n  s_add_u32 s64, s24, s61\n  s_addc_u32 s65, s25, 0')
    a(f'  s_mov_b32 s59, 0\n  s_mov_b32 s60, {S}')
    a('L_v:')
    H(2)
    rowaddr()
    a(f'  s_sub_u32 s45, s38, {LAG+4}\n  s_cmp_lt_u32 s45, {LAG-2}\n  s_cselect_b64 vcc, -1, 0')
    a(f'  s_cmp_eq_u32 s38, {CHK}\n  s_cbranch_scc0 L_v0')
    a('  s_load_dwordx2 s[62:63], s[78:79], 8       ; {nonce, ready}')
    a('L_v0:')
    a(f'  s_cmp_eq_u32 s38, {S-2}\n  s_cbranch_scc0 L_v1')
    a('  s_waitcnt lgkmcnt(0)\n  s_cmp_eq_u32 s63, 1\n  s_cbranch_scc0 L_slow')
    a('L_rdy:')
    req()
    a('L_v1:')
    tiles()
    group(12, VV, extra=True, hooks={n:(lambda: H(2)) for n in (0,8)})
    a('  s_cmp_eq_u32 s53, 2\n  s_cbranch_scc1 L_fin')
    a(f'  s_cmp_lt_u32 s38, {S-1}\n  s_cbranch_scc1 L_v')
    H()
    a('  s_mov_b32 s53, 1\n  s_mov_b64 vcc, -1')
    a('  s_cmp_lg_u32 s59, 0\n  s_cbranch_scc1 L_d2')
    a(f'  s_waitcnt lgkmcnt(0)\n  s_cmp_lt_u32 s58, {R*8}\n  s_cbranch_scc0 L_last')
    a(f'  s_lshr_b32 s45, s58, 3\n  s_lshl_b32 s45, s45, 2\n  s_lshr_b32 s59, {szp}, s45\n  s_and_b32 s59, s59, 15\n  s_lshr_b32 s38, {prep}, s45\n  s_and_b32 s38, s38, 15')
    a(f'  s_add_u32 s38, s38, {S}')
    H()
    a('  s_bfe_u32 s45, s58, 0x20001\n  s_lshl2_add_u32 s37, s39, s45\n  s_lshl_b32 s37, s37, 21\n  s_and_b32 s45, s58, 1\n  s_lshl_b32 s45, s45, 14\n  s_or_b32 s37, s37, s45')
    a('L_d2:')
    a('  s_add_u32 s60, s60, 1\n  s_sub_u32 s59, s59, 1\n  s_cmp_lg_u32 s59, 0\n  s_cbranch_scc1 L_k')
    req()
    a('  s_branch L_k')
    a('L_last:')
    H()
    a(f'  v_mov_b32 v{T}, s60\n  v_mov_b32 v{BC}, {LCTL}\n  ds_write_b32 v{BC}, v{T}\n  s_mov_b32 s53, 2\n  s_waitcnt lgkmcnt(0)')
    a('L_dv:')
    a('  s_mov_b32 s45, s16\n  s_mov_b32 s16, s54\n  s_mov_b32 s54, s45\n  s_mov_b64 vcc, 0\n  s_branch L_v1')
    a('L_fin:')
    X=KS; D=KR; R0=64; MY=28
    def pk(d,x,y): a(f'  v_pk_add_f32 v[{d}:{d+1}], v[{x}:{x+1}], v[{y}:{y+1}]')
    nt=1
    a(f'  s_lshl_b32 s80, s2, 10\n  v_mov_b32 v{T+1}, 1\n  v_mov_b32 v{AD+1}, 4')
    if own:
        a(f'  buffer_load_dwordx4 v[{R0}:{R0+3}], v{VV}, s[24:27], s80 offen'); nt+=1
    H()
    a(f'  s_mov_b64 exec, 1\n  buffer_atomic_add v{T+1}, v{AD+1}, s[24:27], s61 offen sc0\n  s_mov_b64 exec, -1')
    a(f'  s_waitcnt vmcnt({16+nt})\n  s_barrier')
    for k in range(1,8): a(f'  s_xor_b32 s{80+k}, s80, {k*1024}')
    H()
    a('  s_mov_b64 s[28:29], s[76:77]\n  s_movk_i32 s30, 8192\n  s_mov_b32 s31, s11\n  s_lshl_b32 s44, s39, 8\n  s_mov_b32 s49, 0x100000')
    a(f'  v_mov_b32 v{MY+3}, s62\n  v_lshlrev_b32 v{EA}, 3, v0\n  v_add_u32 v{EA}, {LRED}, v{EA}\n  v_mov_b32 v{EB}, {LDEN}\n  v_lshlrev_b32 v{AD}, 2, v0')
    H()
    a(f'  s_waitcnt vmcnt({nt})')
    if stamps: a('  s_memrealtime s[6:7]')
    if tail: a('  s_memtime s[4:5]')
    a('  s_barrier')
    for i in range(4): a(f'  ds_read_b128 v[{D+i*4}:{D+i*4+3}], v{EB} offset:{i*16}')
    H()
    a('  s_waitcnt lgkmcnt(0)')
    for i in range(4): pk(D+i*4, D+i*4, D+i*4+2)
    pk(D,D,D+4); pk(D+8,D+8,D+12); pk(D,D,D+8)
    H()
    a(f'  v_add_f32 v{MY+2}, v{D}, v{D+1}')
    a(f'  s_waitcnt vmcnt(0)\n  v_readfirstlane_b32 s55, v{T+1}\n  s_nop 0\n  s_cmp_eq_u32 s55, 7')
    a('  s_barrier')
    if tail: a('  s_memtime s[90:91]')
    for i in range(8): a(f'  ds_read_b64 v[{X+i*2}:{X+i*2+1}], v{EA} offset:{i*512}')
    H()
    for i in range(4):
        a(f'  s_waitcnt lgkmcnt({0 if tail else 6-2*i})')
        pk(X+i*4, X+i*4, X+i*4+2)
        if i==1: pk(X,X,X+4)
    pk(X+8,X+8,X+12)
    pk(MY,X,X+8)
    if tail: a('  s_memtime s[92:93]')
    a('  s_cbranch_scc1 L_poll')
    a(f'  buffer_store_dwordx4 v[{MY}:{MY+3}], v{VV}, s[24:27], s80 offen sc1')
    if stamps: a('  s_mov_b64 s[34:35], 0\n  s_waitcnt vmcnt(0)\n  s_memrealtime s[32:33]\n  s_branch L_stamp')
    else: a('  s_endpgm')
    H()
    a('L_poll:')
    for k in range(1,8):
        a(f'  buffer_load_dwordx4 v[{R0+k*4}:{R0+k*4+3}], v{VV}, s[24:27], s{80+k} offen sc1')
    H()
    a('  s_sub_u32 s49, s49, 1\n  s_cbranch_scc1 L_end')
    a('  s_waitcnt vmcnt(0)')
    if tail: a('  s_memtime s[94:95]')
    a(f'  v_xor_b32 v{T}, v{MY+3}, v{R0+7}')
    for k in range(2,8):
        a(f'  v_bitop3_b32 v{T}, v{T}, v{R0+k*4+3}, v{MY+3} bitop3:0xf6')
    a(f'  v_cmp_ne_u32 vcc, 0, v{T}')
    pk(R0, MY, R0+4); a(f'  v_add_f32 v{R0+2}, v{MY+2}, v{R0+6}')
    for i in range(1,4):
        pk(R0+i*8, R0+i*8, R0+i*8+4); a(f'  v_add_f32 v{R0+i*8+2}, v{R0+i*8+2}, v{R0+i*8+6}')
    a('  s_cbranch_vccnz L_poll')
    H()
    a(f'  v_add_f32 v{R0+2}, v{R0+2}, v{R0+10}\n  v_add_f32 v{R0+18}, v{R0+18}, v{R0+26}')
    pk(R0, R0, R0+8)
    a(f'  v_add_f32 v{R0+2}, v{R0+2}, v{R0+18}')
    pk(R0+16, R0+16, R0+24)
    a(f'  v_add_f32 v{R0+2}, 0x358637bd, v{R0+2}')
    a(f'  v_rcp_f32 v{R0+3}, v{R0+2}')
    pk(R0,R0,R0+16)
    for r in range(2): a(f'  v_mul_f32 v{R0+4+r}, v{R0+r}, v{R0+3}')
    for r in range(2): a(f'  v_fma_f32 v{R0+6+r}, -v{R0+4+r}, v{R0+2}, v{R0+r}')
    for r in range(2): a(f'  v_fma_f32 v{R0+4+r}, v{R0+6+r}, v{R0+3}, v{R0+4+r}')
    a(f'  v_cvt_pk_bf16_f32 v{R0}, v{R0+4}, v{R0+5}')
    a(f'  buffer_store_dword v{R0}, v{AD}, s[28:31], s44 offen')
    if stamps: a('  s_branch L_stamp0')
    a('L_end:\n  s_endpgm')
    if warm>=1: a(f'L_h{chains["h"][0]}:\n  s_branch L_hret')
    a('.p2align 5')
    for i in range(padk): a('  s_nop 0')
    G=lambda: H(3,'g')
    a('L_K:')
    for j in range(4): a(f'  v_add_u32 v{AD+j}, s50, v{BK+j}')
    G()
    a('  s_barrier')
    a('L_K1:')
    for j in range(4): a(f'  ds_read_b128 v[{KR+j*4}:{KR+j*4+3}], v{AD+j}')
    a('  s_addk_i32 s50, 0x4000\n  s_bitset0_b32 s50, 17')
    a(f'  s_and_b32 s45, s51, 63\n  s_lshl_b32 s45, s45, 8\n  v_add_u32 v{AD}, s45, v{BW}')
    for j in range(4):
        a(f'  s_waitcnt lgkmcnt({3-j})')
        for d in range(4):
            x=KR+j*4+d; t=T+2*d
            a(f'  v_lshlrev_b32 v{t}, 16, v{x}')
            a(f'  v_and_b32 v{t+1}, s43, v{x}')
        for d in range(4):
            t=T+2*d
            a(f'  v_pk_mul_f32 v[{t}:{t+1}], v[{t}:{t+1}], s[40:41]')
        for d in range(4):
            t=T+2*d
            a(f'  v_cvt_pk_bf16_f32 v{KS+j*4+d}, v{t}, v{t+1}')
        if j>0:
            jj=j-1; k=KS+jj*4
            a(f'  v_mfma_f32_16x16x32_bf16 v[{GR}:{GR+3}], v[{k}:{k+3}], v[{k}:{k+3}], '+('0' if jj==0 else f'v[{GR}:{GR+3}]'))
            a(f'  v_mfma_f32_16x16x32_bf16 v[{PR}:{PR+3}], a[{OM+jj*4}:{OM+jj*4+3}], v[{k}:{k+3}], '+('0' if jj==0 else f'v[{PR}:{PR+3}]'))
        if j in (0,2): G()
    k=KS+12
    a(f'  v_mfma_f32_16x16x32_bf16 v[{GR}:{GR+3}], v[{k}:{k+3}], v[{k}:{k+3}], v[{GR}:{GR+3}]')
    a(f'  v_mfma_f32_16x16x32_bf16 v[{PR}:{PR+3}], a[{OM+12}:{OM+15}], v[{k}:{k+3}], v[{PR}:{PR+3}]')
    G()
    a('  s_nop 6')
    a(f'  v_and_b32 v{T}, v{GR}, v{DM}')
    a(f'  v_and_or_b32 v{T}, v{GR+1}, v{DM+1}, v{T}')
    a(f'  v_and_or_b32 v{T}, v{GR+2}, v{DM+2}, v{T}')
    a(f'  v_and_or_b32 v{T}, v{GR+3}, v{DM+3}, v{T}')
    a(f'  v_cvt_pk_bf16_f32 v{PR}, 0, v{PR}')
    a(f'  v_cvt_pk_bf16_f32 v{PR+1}, 0, v{PR+1}')
    a(f'  v_mfma_f32_16x16x4_f32 v[{SQ}:{SQ+3}], v{ONE}, v{T}, 0')
    a(f'  v_cvt_pk_bf16_f32 v{PR+2}, 0, v{PR+2}')
    a(f'  v_cvt_pk_bf16_f32 v{PR+3}, 0, v{PR+3}')
    a('  s_nop 7')
    a(f'  v_cvt_pk_bf16_f32 v{T}, 0, v{SQ}')
    for r in range(4): a(f'  v_fma_f32 v{PR+r}, v{T}, -0.5, v{PR+r}')
    for r in range(4): a(f'  v_cvt_pk_bf16_f32 v{PR+r}, 0, v{PR+r}')
    for r in range(4): a(f'  v_fma_f32 v{PR+r}, v{PR+r}, s42, -2.0')
    for r in range(4): a(f'  v_exp_f32 v{PR+r}, v{PR+r}')
    a('  s_add_u32 s51, s51, 1')
    G()
    for r in range(4): a(f'  v_cvt_pk_bf16_f32 v{PR+r}, 0, v{PR+r}')
    for r in range(4): a(f'  v_add_f32 v{PR+r}, s47, v{PR+r}')
    a(f'  v_cvt_pk_bf16_f32 v{PK}, v{PR}, v{PR+1}')
    a(f'  v_cvt_pk_bf16_f32 v{PK+1}, v{PR+2}, v{PR+3}')
    a('  s_cmp_eq_u32 s51, 0\n  s_cbranch_scc1 L_Q')
    a(f'  v_mfma_f32_16x16x16_bf16 v[{WW}:{WW+3}], v[{PK}:{PK+1}], v[{PHIQ}:{PHIQ+1}], 0')
    a(f'  v_mfma_f32_16x16x16_bf16 v[{DEN}:{DEN+3}], v[{PK}:{PK+1}], v[{PHIQ}:{PHIQ+1}], v[{DEN}:{DEN+3}]')
    a(f'  s_cmp_lt_u32 s51, {S}')
    a('  s_nop 5')
    a(f'  ds_write_b128 v{AD}, v[{WW}:{WW+3}]')
    a('  s_cbranch_scc1 L_K')
    G2=lambda: H(2,'g')
    a('L_V:')
    a(f'  s_and_b32 s45, s52, 63\n  s_lshl_b32 s45, s45, 8\n  v_add_u32 v{AD}, s45, v{BW}')
    a(f'  ds_read_b128 v[{WW}:{WW+3}], v{AD}')
    a(f'  v_add_u32 v{AD+1}, s50, v{BV}')
    a('  s_addk_i32 s50, 0x4000\n  s_bitset0_b32 s50, 17\n  s_add_u32 s52, s52, 1')
    G2()
    a('  s_waitcnt lgkmcnt(0)')
    for r in range(4): a(f'  v_cvt_pk_bf16_f32 v{T+r}, 0, v{WW+r}')
    for r in range(4): a(f'  v_fma_f32 v{T+r}, v{T+r}, v{NEGSEL}, v{WW+r}')
    for r in range(4): a(f'  v_cvt_pk_bf16_f32 v{T+r}, v{T+r}, v{T+r}')
    G2()
    for r in range(4):
        for q in range(4):
            a(f'  v_and_b32 v{AA+r*4+q}, v{T+r}, v{AM+q}')
    G2()
    a('  s_barrier')
    for r in range(4): a(f'  ds_read_b128 v[{KR+r*4}:{KR+r*4+3}], v{AD+1} offset:{r*256}')
    a(f'  ds_read_b32 v{T}, v{BC}')
    a('  s_cmp_eq_u32 s52, s51')
    for r in range(4):
        a(f'  s_waitcnt lgkmcnt({4-r})')
        a(f'  v_mfma_f32_16x16x32_bf16 v[{ACC}:{ACC+3}], v[{AA+r*4}:{AA+r*4+3}], v[{KR+r*4}:{KR+r*4+3}], v[{ACC}:{ACC+3}]')
    a('  s_cbranch_scc0 L_V2')
    a('  s_nop 6')
    a(f'  ds_write_b128 v{EA}, v[{ACC}:{ACC+3}]')
    a('  s_waitcnt lgkmcnt(0)\n  s_barrier\n  s_endpgm')
    a('L_V2:')
    G2()
    a('  s_waitcnt lgkmcnt(0)')
    a(f'  v_readfirstlane_b32 s46, v{T}')
    a('  s_add_u32 s45, s52, 1\n  s_cmp_lt_u32 s45, s51\n  s_cbranch_scc1 L_V')
    a('  s_cmp_eq_u32 s46, s51\n  s_cbranch_scc0 L_K')
    a(f'  v_add_f32 v{SQ}, v{DEN}, v{DEN+1}\n  v_add_f32 v{SQ+1}, v{DEN+2}, v{DEN+3}')
    a(f'  v_add_f32 v{SQ}, v{SQ}, v{SQ+1}')
    a(f'  ds_write_b32 v{EB}, v{SQ}')
    a('  s_branch L_V')
    a('L_Q:')
    a(f'  v_mov_b32 v{PHIQ}, v{PK}\n  v_mov_b32 v{PHIQ+1}, v{PK+1}\n  s_lshl_b32 s50, s3, 10\n  s_branch L_K')
    if warm>=2: a(f'L_g{chains["g"][0]}:\n  s_branch L_gret')
    a('L_hotend:')
    a('L_cons:')
    a('  s_sub_u32 s3, s3, 1')
    a('  s_load_dwordx2 s[20:21], s[0:1], 0         ; q')
    a('  s_movk_i32 s18, 4096\n  s_mov_b32 s19, s11\n  s_movk_i32 s22, 8192\n  s_mov_b32 s23, s11\n  s_mov_b32 s26, 0x100000\n  s_mov_b32 s27, s11')
    a(f'  s_lshl_b32 s44, s39, 8\n  v_mov_b32 v{BC}, {LCTL}')
    for r in range(4): a(f'  v_mov_b32 v{DEN+r}, 0\n  v_mov_b32 v{ACC+r}, 0')
    a('  s_waitcnt lgkmcnt(0)')
    a('  s_mov_b64 s[16:17], s[74:75]')
    a('  s_cmp_eq_u32 s3, 0\n  s_cbranch_scc0 L_c1')
    for p in range(4):
        a(f'  s_mov_b32 m0, {A7+p*4096}\n  s_nop 0\n  buffer_load_dwordx4 v{VK+p}, s[16:19], 0 offen lds')
    a(f'  s_cmp_eq_u32 s2, {initwg}\n  s_cbranch_scc0 L_c3')
    a('  s_call_b64 s[66:67], L_init')
    a('  s_branch L_c3')
    a('L_c1:\n  s_cmp_eq_u32 s3, 1\n  s_cbranch_scc0 L_c2')
    for p in range(4):
        a(f'  s_mov_b32 m0, {A7+p*4096+1024}\n  v_and_b32 v{VK+p}, 0xff, v{VK+p}\n  buffer_load_dwordx4 v{VK+p}, s[20:23], s44 offen lds')
    a('  s_branch L_c3')
    a('L_c2:\n  s_cmp_eq_u32 s3, 2\n  s_cbranch_scc0 L_c4')
    a(f'  ds_write_b32 v{BC}, v{DEN}')
    if warm>=2: a('  s_mov_b64 exec, 0\n  s_branch L_g0\nL_gret:\n  s_mov_b64 exec, -1')
    a('  s_branch L_c3')
    a('L_c4:')
    if warm>=1: a('  s_mov_b64 exec, 0\n  s_branch L_h0\nL_hret:\n  s_mov_b64 exec, -1')
    a('L_c3:')
    a('  s_mov_b32 s40, 0x3e9837f0\n  s_mov_b32 s41, s40\n  s_mov_b32 s42, 0x3fb8aa3b\n  s_mov_b32 s43, 0xffff0000\n  s_mov_b32 s47, 0x358637bd')
    a(f'  v_and_b32 v{T}, 15, v0')
    a(f'  v_lshlrev_b32 v{T+2}, 2, v{T+1}')
    a(f'  v_sub_u32 v{T+2}, v{T}, v{T+2}')
    for r in range(4):
        a(f'  v_cmp_eq_u32 vcc, {r}, v{T+2}\n  s_nop 1\n  v_cndmask_b32 v{DM+r}, 0, -1, vcc')
    a(f'  v_and_b32 v{T+3}, 1, v{T}')
    a(f'  v_cmp_eq_u32 vcc, 1, v{T+3}\n  v_mov_b32 v{T+4}, 0xffff\n  v_mov_b32 v{T+5}, s43\n  v_cndmask_b32 v{T+4}, v{T+4}, v{T+5}, vcc')
    a(f'  v_bfe_u32 v{T+3}, v{T}, 1, 2')
    for q in range(4):
        a(f'  v_cmp_eq_u32 vcc, {q}, v{T+3}\n  s_nop 1\n  v_cndmask_b32 v{AM+q}, 0, v{T+4}, vcc')
    a(f'  v_mov_b32 v{ONE}, 1.0')
    a(f'  v_cmp_lt_u32 vcc, 7, v{T}\n  s_nop 1\n  v_cndmask_b32 v{NEGSEL}, 0, -1.0, vcc')
    a(f'  v_lshrrev_b32 v{T+2}, 2, v{T}\n  v_lshlrev_b32 v{BK}, 12, v{T+2}\n  v_and_b32 v{T+2}, 3, v{T}\n  v_lshl_add_u32 v{BK}, v{T+2}, 8, v{BK}')
    a(f'  v_xor_b32 v{T+2}, v{T}, v{T+1}\n  v_lshl_add_u32 v{BK}, v{T+2}, 4, v{BK}')
    for j in range(1,4): a(f'  v_xor_b32 v{BK+j}, {j*64}, v{BK}')
    a(f'  v_lshlrev_b32 v{BV}, 12, v{T+1}\n  v_lshl_add_u32 v{BV}, v{T}, 4, v{BV}')
    a(f'  s_lshl_b32 s45, s3, 6\n  s_add_u32 s45, s45, {LW}\n  v_lshl_add_u32 v{BW}, v{T+1}, 4, s45')
    a(f'  v_lshlrev_b32 v{EA}, 5, v{T}\n  v_and_b32 v{T+2}, 1, v{T+1}\n  v_lshl_add_u32 v{EA}, v{T+2}, 4, v{EA}')
    a(f'  v_lshrrev_b32 v{T+2}, 5, v0\n  s_lshl_b32 s45, s3, 1\n  v_add_lshl_u32 v{T+2}, v{T+2}, s45, 9\n  v_add_u32 v{EA}, v{EA}, v{T+2}\n  v_add_u32 v{EA}, {LRED}, v{EA}')
    a(f'  s_lshl_b32 s45, s3, 2\n  v_add_lshl_u32 v{EB}, v{T+1}, s45, 2\n  v_add_u32 v{EB}, {LDEN}, v{EB}')
    a(f'  s_mov_b32 s50, {A7+1024}\n  s_mov_b32 s51, -1\n  s_mov_b32 s52, 0')
    for j in range(4): a(f'  v_add_u32 v{AD+j}, {A7}, v{BK+j}')
    a('  s_waitcnt vmcnt(0) lgkmcnt(0)\n  s_barrier')
    for j in range(4): a(f'  ds_read_b128 a[{OM+j*4}:{OM+j*4+3}], v{AD+j}')
    for j in range(4): a(f'  v_add_u32 v{AD+j}, s50, v{BK+j}')
    a('  s_waitcnt lgkmcnt(0)')
    a('  s_branch L_K1')
    a('L_slow:')
    a('  s_call_b64 s[66:67], L_init')
    a('  s_mov_b32 s45, 0x100000')
    a('L_sp:\n  s_waitcnt lgkmcnt(0)\n  s_mov_b64 s[62:63], 0\n  s_atomic_add_x2 s[62:63], s[78:79], 8 glc\n  s_waitcnt lgkmcnt(0)')
    a('  s_cmp_eq_u32 s63, 1\n  s_cbranch_scc1 L_rdy\n  s_sub_u32 s45, s45, 1\n  s_cbranch_scc0 L_sp\n  s_branch L_rdy')
    a('L_init:')
    a('  s_mov_b32 s45, 1\n  s_atomic_add s45, s[78:79], 0 glc\n  s_waitcnt lgkmcnt(0)')
    a('  s_cmp_eq_u32 s45, 0\n  s_cbranch_scc0 L_iret')
    a(f'  s_mov_b32 s45, 1\n  s_atomic_add s45, s[24:25], {hex(NONCE)} glc')
    a(f'  s_movk_i32 s48, {CTRSTRIDE}\n  v_mul_lo_u32 v{KS+2}, v0, s48\n  v_mov_b32 v{KS}, 0\n  v_mov_b32 v{KS+1}, 0\n  s_mov_b32 s48, {CTR}')
    a(f'  s_mov_b32 exec_hi, 0\n  buffer_store_dwordx2 v[{KS}:{KS+1}], v{KS+2}, s[24:27], s48 offen sc1\n  s_mov_b32 exec_hi, -1')
    a('  s_waitcnt vmcnt(0) lgkmcnt(0)')
    a('  s_add_u32 s48, s45, 1\n  s_mov_b32 s49, 1\n  s_atomic_swap_x2 s[48:49], s[78:79], 8')
    a('L_iret:')
    a('  s_setpc_b64 s[66:67]')
    if stamps:
        a('L_stamp0:')
        if tail: a('  s_memtime s[96:97]')
        a('  s_waitcnt vmcnt(0)\n  s_memrealtime s[34:35]\n  s_mov_b64 s[32:33], 0')
        if tail or head:
            a('  s_memtime s[98:99]\n  s_waitcnt lgkmcnt(0)' if tail else '  s_waitcnt lgkmcnt(0)')
            for i in range(5): a(f'  s_sub_u32 s{90+2*i}, s{90+2*i}, s4\n  v_mov_b32 v{KR+i}, s{90+2*i}')
            a(f'  s_lshl_b32 s47, s39, 5\n  s_add_u32 s47, s47, 0xa0000\n  v_mov_b32 v{T}, 0')
            a(f'  buffer_store_dwordx4 v[{KR}:{KR+3}], v{T}, s[24:27], s47 offen\n  buffer_store_dword v{KR+4}, v{T}, s[24:27], s47 offen offset:16')
        a('L_stamp:\n  s_getreg_b32 s46, hwreg(HW_REG_XCC_ID)\n  s_sub_u32 s49, 0xfffff, s49\n  s_waitcnt lgkmcnt(0)')
        a(f'  v_mov_b32 v{KS}, s70\n  v_mov_b32 v{KS+1}, s71\n  v_mov_b32 v{KS+2}, s6\n  v_mov_b32 v{KS+3}, s7')
        a(f'  v_mov_b32 v{KS+4}, s32\n  v_mov_b32 v{KS+5}, s33\n  v_mov_b32 v{KS+6}, s46\n  v_mov_b32 v{KS+7}, s60')
        a(f'  v_mov_b32 v{KS+8}, s34\n  v_mov_b32 v{KS+9}, s35\n  v_mov_b32 v{KS+10}, s49\n  v_mov_b32 v{KS+11}, 0')
        a(f'  v_mov_b32 v{KS+12}, s68\n  v_mov_b32 v{KS+13}, s69')
        if trace:
            a(f'  s_lshl_b32 s47, s2, 10\n  s_add_u32 s47, s47, 0xc0000')
            for i in range(3): a(f'  buffer_store_dword v{96+i}, v{AD}, s[24:27], s47 offen offset:{256*i}')
        a(f'  s_lshl_b32 s47, s2, 6\n  s_add_u32 s47, s47, 0x80000\n  v_mov_b32 v{T}, 0\n  s_mov_b64 exec, 1')
        for i in range(4): a(f'  buffer_store_dwordx4 v[{KS+4*i}:{KS+4*i+3}], v{T}, s[24:27], s47 offen offset:{16*i}')
        a('  s_endpgm')
    a(f'''.section .rodata,"a"
.p2align 6
.amdhsa_kernel {NAME}
  .amdhsa_next_free_vgpr {acc_off+na}
  .amdhsa_next_free_sgpr {100 if (trace or tail or head) else 88}
  .amdhsa_accum_offset {acc_off}
  .amdhsa_group_segment_fixed_size 0
  .amdhsa_kernarg_size 56
  .amdhsa_user_sgpr_count 2
  .amdhsa_user_sgpr_kernarg_segment_ptr 1
  .amdhsa_system_sgpr_workgroup_id_x 1
  .amdhsa_float_denorm_mode_32 3
.end_amdhsa_kernel
''')
    return '\n'.join(o)
if __name__=='__main__':
    import json
    kw = json.loads(sys.argv[1]) if len(sys.argv)>1 else {}
    print(gen(**kw))
```

```python
import sys
NAME='standalone__linear_kernel_rfa__decode_kernel'
HEAD='''; Kernarg layout for this problem (56 bytes, ptrs only, base s[0:1]):
'''
DOC='''
;
'''
CTR=0x40000; CTRSTRIDE=4352; NONCE=0x7ff00
def gen(sizes=(2,1), win=21, LAG=6, gap=1, stamps=False, CHK=24, initwg=0, warm=0, own=True, al=12, fill=0,
        prio=3, trace=False, tail=False, head=False, padk=0, topen=None, ownpol='', stpol='sc1', staged=True, newton=True, amp=0):
    o=[]; a=o.append
    nwg=256; pol='nt'
    sizes=list(sizes); S=64-sum(sizes); R=len(sizes)
    szp=0; pre=0; prep=0
    for r,s in enumerate(sizes): szp|=s<<(4*r); prep|=pre<<(4*r); pre+=s
    NSTAR=win-17
    assert 0<=NSTAR<8 and 3<=LAG<=6 and LAG-1-gap>=1 and R>=1 and 2*LAG+2<CHK<S-6
    RING=0x20000; LW=RING; LRED=LW+16384; LDEN=LRED+4096; LCTL=LDEN+64; lds=LCTL+64
    A7=7*16384
    VK=2; VV=6
    DM=10; AM=14; ONE,NEGSEL=18,19; PHIQ=20; PK=22; T=24; KS=32; KR=48; PR=64; GR=68; SQ=72; WW=76; DEN=80; ACC=84; AA=88
    BK=104; BV=108; BW=109; BC=110; EA=111; EB=112; AD=114
    nv=118; OM=0; na=16
    acc_off=(nv+3)//4*4
    chains={'h':[0],'g':[0]}
    def H(level=1, ch='h'):
        if warm>=level:
            n=chains[ch][0]; a(f'L_{ch}{n}:\n  s_cbranch_execz L_{ch}{n+1}'); chains[ch][0]+=1
    def Hend(ch, level=1):
        if warm>=level: a(f'L_{ch}{chains[ch][0]}:\n  s_cbranch_execz L_{ch}ret')
    a(HEAD+f'; @launch grid=({nwg},1,1) block=(320,1,1) lds={lds}'+DOC.rstrip())
    a('.amdgcn_target "amdgcn-amd-amdhsa--gfx950"\n.text')
    if al: a(f'.p2align {al}')
    if fill: a(f'.fill {fill//4}, 4, 0xbf810000')
    a(f'.globl {NAME}\n.p2align 8\n.type {NAME},@function\n{NAME}:')
    a('  s_load_dwordx2 s[8:9], s[0:1], 8           ; k')
    a('  s_load_dwordx8 s[72:79], s[0:1], 16')
    a('  s_load_dwordx2 s[24:25], s[0:1], 48        ; ws')
    a(f'  s_cmpk_ge_u32 s2, {nwg}\n  s_cbranch_scc1 L_end')
    if stamps or amp: a('  s_memrealtime s[70:71]')
    if head: a('  s_memtime s[4:5]')
    a('  v_lshrrev_b32 v1, 6, v0')
    a('  v_and_b32 v0, 63, v0')
    a('  v_readfirstlane_b32 s3, v1')
    a(f'  v_lshrrev_b32 v{T+1}, 4, v0')
    a(f'  v_xor_b32 v{VK}, v0, v{T+1}')
    a(f'  v_lshlrev_b32 v{VK}, 4, v{VK}')
    for p in range(1,4): a(f'  v_xor_b32 v{VK+p}, {p*1024+p*64}, v{VK}')
    a('  s_lshr_b32 s39, s2, 2\n  s_xor_b32 s39, s39, s2\n  s_and_b32 s39, s39, 2\n  s_mul_i32 s39, s39, 5\n  s_xor_b32 s2, s2, s39')
    a('  s_lshr_b32 s39, s2, 3                      ; head')
    a('  s_mov_b32 s11, 0x20000')
    a('  s_cmp_lg_u32 s3, 0\n  s_cbranch_scc1 L_cons')
    a(f'  s_setprio {prio}')
    a('  s_brev_b32 s10, 8                          ; 0x10000000 bytes')
    a('  s_lshr_b32 s37, s2, 1\n  s_lshl_b32 s37, s37, 21\n  s_and_b32 s45, s2, 1\n  s_lshl_b32 s45, s45, 14\n  s_or_b32 s37, s37, s45')
    a('  s_mov_b32 m0, 0\n  s_movk_i32 s56, 4096\n  s_movk_i32 s36, 3072\n  s_mov_b64 vcc, 0\n  s_mov_b32 s38, 0\n  s_mov_b32 s53, 0'+('\n  s_mov_b32 s57, 0' if topen is not None else ''))
    if trace: a('  s_mov_b32 s4, 0\n  s_mov_b32 s94, 0\n  v_mov_b32 v96, 0\n  v_mov_b32 v97, 0\n  v_mov_b32 v98, 0')
    def rowaddr():
        a('  s_and_b32 s16, s38, 3\n  s_and_b32 s17, s38, 12\n  s_lshr_b32 s18, s38, 4\n  s_lshl2_add_u32 s16, s17, s16\n  s_lshl2_add_u32 s16, s18, s16')
        a('  s_lshl_b32 s16, s16, 15\n  s_add_u32 s16, s16, s37\n  s_add_u32 s38, s38, 1')
    def tiles(): a('  s_add_u32 s17, s16, s36\n  s_add_u32 s18, s17, s36\n  s_add_u32 s19, s18, s36')
    lab=[0]
    def group(srd, vo, cond=False, extra=False, hooks={}):
        if trace:
            lab[0]+=1
            a('  s_waitcnt lgkmcnt(0)\n  s_and_b32 s5, s4, 63\n  s_mov_b32 s6, m0\n  s_mov_b32 m0, s5')
            a(f'  s_cmp_lt_u32 s4, 64\n  s_cbranch_scc0 L_t{lab[0]}\n  v_writelane_b32 v96, s94, m0\n  s_branch L_u{lab[0]}')
            a(f'L_t{lab[0]}:\n  s_cmp_lt_u32 s4, 128\n  s_cbranch_scc0 L_w{lab[0]}\n  v_writelane_b32 v97, s94, m0\n  s_branch L_u{lab[0]}')
            a(f'L_w{lab[0]}:\n  v_writelane_b32 v98, s94, m0\nL_u{lab[0]}:\n  s_mov_b32 m0, s6\n  s_add_u32 s4, s4, 1\n  s_memrealtime s[94:95]')
        for n in range(16):
            p,t=divmod(n,4)
            if topen is not None:
                if t==0: a('  s_cmp_lg_u32 s57, 0')
                if n!=NSTAR: a('  s_cbranch_scc1 1')
            a(f'  s_waitcnt vmcnt({win-1})')
            if (n==NSTAR and cond) or (extra and n==NSTAR+8):
                lab[0]+=1
                a(f'  s_cbranch_vccz L_nb{lab[0]}\n  s_barrier\nL_nb{lab[0]}:')
            elif n==NSTAR: a('  s_barrier')
            a(f'  buffer_load_dwordx4 v{vo+p}, s[{srd}:{srd+3}], s{16+t} offen offset:{t*1024} {pol} lds')
            if t==3: a('  s_add_u32 m0, m0, s56')
            if n in hooks: hooks[n]()
        a('  s_bitset0_b32 m0, 17')
    def req(): a('  s_mov_b32 s58, 1\n  s_atomic_add s58, s[64:65], 0 glc')
    if head: a('  s_memtime s[90:91]')
    a('  s_waitcnt lgkmcnt(0)')
    if head: a('  s_memtime s[92:93]')
    a('L_k:')
    rowaddr(); tiles()
    group(8, VK, cond=True)
    if head: a('  s_cmp_eq_u32 s38, 1\n  s_cbranch_scc0 L_x1\n  s_memtime s[94:95]\nL_x1:\n  s_cmp_eq_u32 s38, 2\n  s_cbranch_scc0 L_x2\n  s_memtime s[96:97]\nL_x2:\n  s_cmp_eq_u32 s38, 8\n  s_cbranch_scc0 L_x3\n  s_memtime s[98:99]\nL_x3:')
    a('  s_cmp_lg_u32 s53, 0\n  s_cbranch_scc1 L_dv')
    a(f'  s_cmp_ge_u32 s38, {LAG}\n  s_cselect_b64 vcc, -1, 0\n  s_cmp_eq_u32 s38, {LAG-1-gap}\n  s_cselect_b64 vcc, -1, vcc')
    a(f'  s_cmp_lt_u32 s38, {S}\n  s_cbranch_scc1 L_k')
    if stamps: a('  s_memrealtime s[68:69]')
    H(2)
    a('  s_mov_b64 s[12:13], s[72:73]\n  s_mov_b64 s[14:15], s[10:11]')
    a(f'  v_lshlrev_b32 v{VV}, 4, v0')
    for p in range(1,4): a(f'  v_add_u32 v{VV+p}, {p*1024}, v{VV}')
    a('  s_mov_b32 s54, s16\n  s_mov_b32 s38, 0')
    a('  s_mov_b32 s26, 0x100000\n  s_mov_b32 s27, s11')
    a(f'  s_mul_i32 s61, s39, {CTRSTRIDE}\n  s_add_u32 s61, s61, {CTR}\n  s_add_u32 s64, s24, s61\n  s_addc_u32 s65, s25, 0')
    a(f'  s_mov_b32 s59, 0\n  s_mov_b32 s60, {S}')
    a('L_v:')
    H(2)
    rowaddr()
    a(f'  s_sub_u32 s45, s38, {LAG+4}\n  s_cmp_lt_u32 s45, {LAG-2}\n  s_cselect_b64 vcc, -1, 0')
    a(f'  s_cmp_eq_u32 s38, {CHK}\n  s_cbranch_scc0 L_v0')
    a('  s_load_dwordx2 s[62:63], s[78:79], 8       ; {nonce, ready}')
    a('L_v0:')
    a(f'  s_cmp_eq_u32 s38, {S-2}\n  s_cbranch_scc0 L_v1')
    a('  s_waitcnt lgkmcnt(0)\n  s_cmp_eq_u32 s63, 1\n  s_cbranch_scc0 L_slow')
    a('L_rdy:')
    req()
    a('L_v1:')
    tiles()
    group(12, VV, extra=True, hooks={n:(lambda: H(2)) for n in (0,8)})
    a('  s_cmp_eq_u32 s53, 2\n  s_cbranch_scc1 L_fin')
    a(f'  s_cmp_lt_u32 s38, {S-1}\n  s_cbranch_scc1 L_v')
    H()
    a('  s_mov_b32 s53, 1\n  s_mov_b64 vcc, -1')
    a('  s_cmp_lg_u32 s59, 0\n  s_cbranch_scc1 L_d2')
    a(f'  s_waitcnt lgkmcnt(0)\n  s_cmp_lt_u32 s58, {R*8}\n  s_cbranch_scc0 L_last')
    if topen is not None: a(f'  s_cmp_ge_u32 s58, {topen}\n  s_cselect_b32 s57, 1, 0')
    a(f'  s_lshr_b32 s45, s58, 3\n  s_lshl_b32 s45, s45, 2\n  s_lshr_b32 s59, {szp}, s45\n  s_and_b32 s59, s59, 15\n  s_lshr_b32 s38, {prep}, s45\n  s_and_b32 s38, s38, 15')
    a(f'  s_add_u32 s38, s38, {S}')
    H()
    a('  s_bfe_u32 s45, s58, 0x20001\n  s_lshl2_add_u32 s37, s39, s45\n  s_lshl_b32 s37, s37, 21\n  s_and_b32 s45, s58, 1\n  s_lshl_b32 s45, s45, 14\n  s_or_b32 s37, s37, s45')
    a('L_d2:')
    a('  s_add_u32 s60, s60, 1\n  s_sub_u32 s59, s59, 1\n  s_cmp_lg_u32 s59, 0\n  s_cbranch_scc1 L_k')
    req()
    a('  s_branch L_k')
    a('L_last:')
    H()
    a(f'  v_mov_b32 v{T}, s60\n  v_mov_b32 v{BC}, {LCTL}\n  ds_write_b32 v{BC}, v{T}\n  s_mov_b32 s53, 2\n  s_waitcnt lgkmcnt(0)')
    a('L_dv:')
    a('  s_mov_b32 s45, s16\n  s_mov_b32 s16, s54\n  s_mov_b32 s54, s45\n  s_mov_b64 vcc, 0\n  s_branch L_v1')
    a('L_fin:')
    X=KS; D=KR; R0=64; MY=28
    def pk(d,x,y): a(f'  v_pk_add_f32 v[{d}:{d+1}], v[{x}:{x+1}], v[{y}:{y+1}]')
    nt=1
    a(f'  s_lshl_b32 s80, s2, 10\n  v_mov_b32 v{T+1}, 1\n  v_mov_b32 v{AD+1}, 4')
    if own:
        a(f'  buffer_load_dwordx4 v[{R0}:{R0+3}], v{VV}, s[24:27], s80 offen {ownpol}'); nt+=1
    H()
    a(f'  s_mov_b64 exec, 1\n  buffer_atomic_add v{T+1}, v{AD+1}, s[24:27], s61 offen sc0\n  s_mov_b64 exec, -1')
    a(f'  s_waitcnt vmcnt({16+nt})\n  s_barrier')
    for k in range(1,8): a(f'  s_xor_b32 s{80+k}, s80, {k*1024}')
    H()
    a('  s_mov_b64 s[28:29], s[76:77]\n  s_movk_i32 s30, 8192\n  s_mov_b32 s31, s11\n  s_lshl_b32 s44, s39, 8\n  s_mov_b32 s49, 0x100000')
    a(f'  v_mov_b32 v{MY+3}, s62\n  v_lshlrev_b32 v{EA}, 3, v0\n  v_add_u32 v{EA}, {LRED}, v{EA}\n  v_mov_b32 v{EB}, {LDEN}\n  v_lshlrev_b32 v{AD}, 2, v0')
    H()
    a(f'  s_waitcnt vmcnt({nt})')
    if stamps: a('  s_memrealtime s[6:7]')
    if tail: a('  s_memtime s[4:5]')
    a('  s_barrier')
    for i in range(4): a(f'  ds_read_b128 v[{D+i*4}:{D+i*4+3}], v{EB} offset:{i*16}')
    H()
    a('  s_waitcnt lgkmcnt(0)')
    for i in range(4): pk(D+i*4, D+i*4, D+i*4+2)
    pk(D,D,D+4); pk(D+8,D+8,D+12); pk(D,D,D+8)
    H()
    a(f'  v_add_f32 v{MY+2}, v{D}, v{D+1}')
    a(f'  s_waitcnt vmcnt(0)\n  v_readfirstlane_b32 s55, v{T+1}\n  s_nop 0\n  s_cmp_eq_u32 s55, 7')
    a('  s_barrier')
    if tail: a('  s_memtime s[90:91]')
    for i in range(8): a(f'  ds_read_b64 v[{X+i*2}:{X+i*2+1}], v{EA} offset:{i*512}')
    H()
    for i in range(4):
        a(f'  s_waitcnt lgkmcnt({0 if tail else 6-2*i})')
        pk(X+i*4, X+i*4, X+i*4+2)
        if i==1: pk(X,X,X+4)
    pk(X+8,X+8,X+12)
    pk(MY,X,X+8)
    if tail: a('  s_memtime s[92:93]')
    a('  s_cbranch_scc1 L_poll')
    a(f'  buffer_store_dwordx4 v[{MY}:{MY+3}], v{VV}, s[24:27], s80 offen {stpol}')
    if stamps: a('  s_mov_b64 s[34:35], 0\n  s_waitcnt vmcnt(0)\n  s_memrealtime s[32:33]\n  s_branch L_stamp')
    else: a('  s_endpgm')
    H()
    a('L_poll:')
    for k in range(1,8):
        a(f'  buffer_load_dwordx4 v[{R0+k*4}:{R0+k*4+3}], v{VV}, s[24:27], s{80+k} offen sc1')
    H()
    a('  s_sub_u32 s49, s49, 1\n  s_cbranch_scc1 L_end')
    if not staged:
        a('  s_waitcnt vmcnt(0)')
        if tail: a('  s_memtime s[94:95]')
        a(f'  v_xor_b32 v{T}, v{MY+3}, v{R0+7}')
        for k in range(2,8):
            a(f'  v_bitop3_b32 v{T}, v{T}, v{R0+k*4+3}, v{MY+3} bitop3:0xf6')
        a(f'  v_cmp_ne_u32 vcc, 0, v{T}')
        pk(R0, MY, R0+4); a(f'  v_add_f32 v{R0+2}, v{MY+2}, v{R0+6}')
        for i in range(1,4):
            pk(R0+i*8, R0+i*8, R0+i*8+4); a(f'  v_add_f32 v{R0+i*8+2}, v{R0+i*8+2}, v{R0+i*8+6}')
        a('  s_cbranch_vccnz L_poll')
        H()
        a(f'  v_add_f32 v{R0+2}, v{R0+2}, v{R0+10}\n  v_add_f32 v{R0+18}, v{R0+18}, v{R0+26}')
        pk(R0, R0, R0+8)
        a(f'  v_add_f32 v{R0+2}, v{R0+2}, v{R0+18}')
        pk(R0+16, R0+16, R0+24)
        a(f'  v_add_f32 v{R0+2}, 0x358637bd, v{R0+2}')
        a(f'  v_rcp_f32 v{R0+3}, v{R0+2}')
        pk(R0,R0,R0+16)
        for r in range(2): a(f'  v_mul_f32 v{R0+4+r}, v{R0+r}, v{R0+3}')
        for r in range(2): a(f'  v_fma_f32 v{R0+6+r}, -v{R0+4+r}, v{R0+2}, v{R0+r}')
        for r in range(2): a(f'  v_fma_f32 v{R0+4+r}, v{R0+6+r}, v{R0+3}, v{R0+4+r}')
    else:
        a(f'  v_add_f32 v{R0+2}, 0x358637bd, v{MY+2}')
        for k in range(1,8):
            a(f'  s_waitcnt vmcnt({7-k})')
            if k==7 and tail: a('  s_memtime s[94:95]')
            if k==1: a(f'  v_xor_b32 v{T}, v{MY+3}, v{R0+7}')
            else: a(f'  v_bitop3_b32 v{T}, v{T}, v{R0+k*4+3}, v{MY+3} bitop3:0xf6')
            a(f'  v_add_f32 v{R0+2}, v{R0+2}, v{R0+k*4+2}')
            if k==7: a(f'  v_cmp_ne_u32 vcc, 0, v{T}\n  v_rcp_f32 v{R0+3}, v{R0+2}')
            pk(R0, MY if k==1 else R0, R0+k*4)
        for r in range(2): a(f'  v_mul_f32 v{R0+4+r}, v{R0+r}, v{R0+3}')
        if newton:
            for r in range(2): a(f'  v_fma_f32 v{R0+6+r}, -v{R0+4+r}, v{R0+2}, v{R0+r}')
            for r in range(2): a(f'  v_fma_f32 v{R0+4+r}, v{R0+6+r}, v{R0+3}, v{R0+4+r}')
        else: a('  s_nop 0')
        a('  s_cbranch_vccnz L_poll')
    a(f'  v_cvt_pk_bf16_f32 v{R0}, v{R0+4}, v{R0+5}')
    a(f'  buffer_store_dword v{R0}, v{AD}, s[28:31], s44 offen')
    if stamps: a('  s_branch L_stamp0')
    if amp: a('  s_branch L_amp')
    a('L_end:\n  s_endpgm')
    if warm>=1: a(f'L_h{chains["h"][0]}:\n  s_branch L_hret')
    a('.p2align 5')
    for i in range(padk): a('  s_nop 0')
    G=lambda: H(3,'g')
    a('L_K:')
    for j in range(4): a(f'  v_add_u32 v{AD+j}, s50, v{BK+j}')
    G()
    a('  s_barrier')
    a('L_K1:')
    for j in range(4): a(f'  ds_read_b128 v[{KR+j*4}:{KR+j*4+3}], v{AD+j}')
    a('  s_addk_i32 s50, 0x4000\n  s_bitset0_b32 s50, 17')
    a(f'  s_and_b32 s45, s51, 63\n  s_lshl_b32 s45, s45, 8\n  v_add_u32 v{AD}, s45, v{BW}')
    for j in range(4):
        a(f'  s_waitcnt lgkmcnt({3-j})')
        for d in range(4):
            x=KR+j*4+d; t=T+2*d
            a(f'  v_lshlrev_b32 v{t}, 16, v{x}')
            a(f'  v_and_b32 v{t+1}, s43, v{x}')
        for d in range(4):
            t=T+2*d
            a(f'  v_pk_mul_f32 v[{t}:{t+1}], v[{t}:{t+1}], s[40:41]')
        for d in range(4):
            t=T+2*d
            a(f'  v_cvt_pk_bf16_f32 v{KS+j*4+d}, v{t}, v{t+1}')
        if j>0:
            jj=j-1; k=KS+jj*4
            a(f'  v_mfma_f32_16x16x32_bf16 v[{GR}:{GR+3}], v[{k}:{k+3}], v[{k}:{k+3}], '+('0' if jj==0 else f'v[{GR}:{GR+3}]'))
            a(f'  v_mfma_f32_16x16x32_bf16 v[{PR}:{PR+3}], a[{OM+jj*4}:{OM+jj*4+3}], v[{k}:{k+3}], '+('0' if jj==0 else f'v[{PR}:{PR+3}]'))
        if j in (0,2): G()
    k=KS+12
    a(f'  v_mfma_f32_16x16x32_bf16 v[{GR}:{GR+3}], v[{k}:{k+3}], v[{k}:{k+3}], v[{GR}:{GR+3}]')
    a(f'  v_mfma_f32_16x16x32_bf16 v[{PR}:{PR+3}], a[{OM+12}:{OM+15}], v[{k}:{k+3}], v[{PR}:{PR+3}]')
    G()
    a('  s_nop 6')
    a(f'  v_and_b32 v{T}, v{GR}, v{DM}')
    a(f'  v_and_or_b32 v{T}, v{GR+1}, v{DM+1}, v{T}')
    a(f'  v_and_or_b32 v{T}, v{GR+2}, v{DM+2}, v{T}')
    a(f'  v_and_or_b32 v{T}, v{GR+3}, v{DM+3}, v{T}')
    a(f'  v_cvt_pk_bf16_f32 v{PR}, 0, v{PR}')
    a(f'  v_cvt_pk_bf16_f32 v{PR+1}, 0, v{PR+1}')
    a(f'  v_mfma_f32_16x16x4_f32 v[{SQ}:{SQ+3}], v{ONE}, v{T}, 0')
    a(f'  v_cvt_pk_bf16_f32 v{PR+2}, 0, v{PR+2}')
    a(f'  v_cvt_pk_bf16_f32 v{PR+3}, 0, v{PR+3}')
    a('  s_nop 7')
    a(f'  v_cvt_pk_bf16_f32 v{T}, 0, v{SQ}')
    for r in range(4): a(f'  v_fma_f32 v{PR+r}, v{T}, -0.5, v{PR+r}')
    for r in range(4): a(f'  v_cvt_pk_bf16_f32 v{PR+r}, 0, v{PR+r}')
    for r in range(4): a(f'  v_fma_f32 v{PR+r}, v{PR+r}, s42, -2.0')
    for r in range(4): a(f'  v_exp_f32 v{PR+r}, v{PR+r}')
    a('  s_add_u32 s51, s51, 1')
    G()
    for r in range(4): a(f'  v_cvt_pk_bf16_f32 v{PR+r}, 0, v{PR+r}')
    for r in range(4): a(f'  v_add_f32 v{PR+r}, s47, v{PR+r}')
    a(f'  v_cvt_pk_bf16_f32 v{PK}, v{PR}, v{PR+1}')
    a(f'  v_cvt_pk_bf16_f32 v{PK+1}, v{PR+2}, v{PR+3}')
    a('  s_cmp_eq_u32 s51, 0\n  s_cbranch_scc1 L_Q')
    a(f'  v_mfma_f32_16x16x16_bf16 v[{WW}:{WW+3}], v[{PK}:{PK+1}], v[{PHIQ}:{PHIQ+1}], 0')
    a(f'  v_mfma_f32_16x16x16_bf16 v[{DEN}:{DEN+3}], v[{PK}:{PK+1}], v[{PHIQ}:{PHIQ+1}], v[{DEN}:{DEN+3}]')
    a(f'  s_cmp_lt_u32 s51, {S}')
    a('  s_nop 5')
    a(f'  ds_write_b128 v{AD}, v[{WW}:{WW+3}]')
    a('  s_cbranch_scc1 L_K')
    G2=lambda: H(2,'g')
    a('L_V:')
    a(f'  s_and_b32 s45, s52, 63\n  s_lshl_b32 s45, s45, 8\n  v_add_u32 v{AD}, s45, v{BW}')
    a(f'  ds_read_b128 v[{WW}:{WW+3}], v{AD}')
    a(f'  v_add_u32 v{AD+1}, s50, v{BV}')
    a('  s_addk_i32 s50, 0x4000\n  s_bitset0_b32 s50, 17\n  s_add_u32 s52, s52, 1')
    G2()
    a('  s_waitcnt lgkmcnt(0)')
    for r in range(4): a(f'  v_cvt_pk_bf16_f32 v{T+r}, 0, v{WW+r}')
    for r in range(4): a(f'  v_fma_f32 v{T+r}, v{T+r}, v{NEGSEL}, v{WW+r}')
    for r in range(4): a(f'  v_cvt_pk_bf16_f32 v{T+r}, v{T+r}, v{T+r}')
    G2()
    for r in range(4):
        for q in range(4):
            a(f'  v_and_b32 v{AA+r*4+q}, v{T+r}, v{AM+q}')
    G2()
    a('  s_barrier')
    for r in range(4): a(f'  ds_read_b128 v[{KR+r*4}:{KR+r*4+3}], v{AD+1} offset:{r*256}')
    a(f'  ds_read_b32 v{T}, v{BC}')
    a('  s_cmp_eq_u32 s52, s51')
    for r in range(4):
        a(f'  s_waitcnt lgkmcnt({4-r})')
        a(f'  v_mfma_f32_16x16x32_bf16 v[{ACC}:{ACC+3}], v[{AA+r*4}:{AA+r*4+3}], v[{KR+r*4}:{KR+r*4+3}], v[{ACC}:{ACC+3}]')
    a('  s_cbranch_scc0 L_V2')
    a('  s_nop 6')
    a(f'  ds_write_b128 v{EA}, v[{ACC}:{ACC+3}]')
    a('  s_waitcnt lgkmcnt(0)\n  s_barrier\n  s_endpgm')
    a('L_V2:')
    G2()
    a('  s_waitcnt lgkmcnt(0)')
    a(f'  v_readfirstlane_b32 s46, v{T}')
    a('  s_add_u32 s45, s52, 1\n  s_cmp_lt_u32 s45, s51\n  s_cbranch_scc1 L_V')
    a('  s_cmp_eq_u32 s46, s51\n  s_cbranch_scc0 L_K')
    a(f'  v_add_f32 v{SQ}, v{DEN}, v{DEN+1}\n  v_add_f32 v{SQ+1}, v{DEN+2}, v{DEN+3}')
    a(f'  v_add_f32 v{SQ}, v{SQ}, v{SQ+1}')
    a(f'  ds_write_b32 v{EB}, v{SQ}')
    a('  s_branch L_V')
    a('L_Q:')
    a(f'  v_mov_b32 v{PHIQ}, v{PK}\n  v_mov_b32 v{PHIQ+1}, v{PK+1}\n  s_lshl_b32 s50, s3, 10\n  s_branch L_K')
    if warm>=2: a(f'L_g{chains["g"][0]}:\n  s_branch L_gret')
    a('L_hotend:')
    a('L_cons:')
    a('  s_sub_u32 s3, s3, 1')
    a('  s_load_dwordx2 s[20:21], s[0:1], 0         ; q')
    a('  s_movk_i32 s18, 4096\n  s_mov_b32 s19, s11\n  s_movk_i32 s22, 8192\n  s_mov_b32 s23, s11\n  s_mov_b32 s26, 0x100000\n  s_mov_b32 s27, s11')
    a(f'  s_lshl_b32 s44, s39, 8\n  v_mov_b32 v{BC}, {LCTL}')
    for r in range(4): a(f'  v_mov_b32 v{DEN+r}, 0\n  v_mov_b32 v{ACC+r}, 0')
    a('  s_waitcnt lgkmcnt(0)')
    a('  s_mov_b64 s[16:17], s[74:75]')
    a('  s_cmp_eq_u32 s3, 0\n  s_cbranch_scc0 L_c1')
    for p in range(4):
        a(f'  s_mov_b32 m0, {A7+p*4096}\n  s_nop 0\n  buffer_load_dwordx4 v{VK+p}, s[16:19], 0 offen lds')
    a(f'  s_cmp_eq_u32 s2, {initwg}\n  s_cbranch_scc0 L_c3')
    a('  s_call_b64 s[66:67], L_init')
    a('  s_branch L_c3')
    a('L_c1:\n  s_cmp_eq_u32 s3, 1\n  s_cbranch_scc0 L_c2')
    for p in range(4):
        a(f'  s_mov_b32 m0, {A7+p*4096+1024}\n  v_and_b32 v{VK+p}, 0xff, v{VK+p}\n  buffer_load_dwordx4 v{VK+p}, s[20:23], s44 offen lds')
    a('  s_branch L_c3')
    a('L_c2:\n  s_cmp_eq_u32 s3, 2\n  s_cbranch_scc0 L_c4')
    a(f'  ds_write_b32 v{BC}, v{DEN}')
    if warm>=2: a('  s_mov_b64 exec, 0\n  s_branch L_g0\nL_gret:\n  s_mov_b64 exec, -1')
    a('  s_branch L_c3')
    a('L_c4:')
    if warm>=1: a('  s_mov_b64 exec, 0\n  s_branch L_h0\nL_hret:\n  s_mov_b64 exec, -1')
    a('L_c3:')
    a('  s_mov_b32 s40, 0x3e9837f0\n  s_mov_b32 s41, s40\n  s_mov_b32 s42, 0x3fb8aa3b\n  s_mov_b32 s43, 0xffff0000\n  s_mov_b32 s47, 0x358637bd')
    a(f'  v_and_b32 v{T}, 15, v0')
    a(f'  v_lshlrev_b32 v{T+2}, 2, v{T+1}')
    a(f'  v_sub_u32 v{T+2}, v{T}, v{T+2}')
    for r in range(4):
        a(f'  v_cmp_eq_u32 vcc, {r}, v{T+2}\n  s_nop 1\n  v_cndmask_b32 v{DM+r}, 0, -1, vcc')
    a(f'  v_and_b32 v{T+3}, 1, v{T}')
    a(f'  v_cmp_eq_u32 vcc, 1, v{T+3}\n  v_mov_b32 v{T+4}, 0xffff\n  v_mov_b32 v{T+5}, s43\n  v_cndmask_b32 v{T+4}, v{T+4}, v{T+5}, vcc')
    a(f'  v_bfe_u32 v{T+3}, v{T}, 1, 2')
    for q in range(4):
        a(f'  v_cmp_eq_u32 vcc, {q}, v{T+3}\n  s_nop 1\n  v_cndmask_b32 v{AM+q}, 0, v{T+4}, vcc')
    a(f'  v_mov_b32 v{ONE}, 1.0')
    a(f'  v_cmp_lt_u32 vcc, 7, v{T}\n  s_nop 1\n  v_cndmask_b32 v{NEGSEL}, 0, -1.0, vcc')
    a(f'  v_lshrrev_b32 v{T+2}, 2, v{T}\n  v_lshlrev_b32 v{BK}, 12, v{T+2}\n  v_and_b32 v{T+2}, 3, v{T}\n  v_lshl_add_u32 v{BK}, v{T+2}, 8, v{BK}')
    a(f'  v_xor_b32 v{T+2}, v{T}, v{T+1}\n  v_lshl_add_u32 v{BK}, v{T+2}, 4, v{BK}')
    for j in range(1,4): a(f'  v_xor_b32 v{BK+j}, {j*64}, v{BK}')
    a(f'  v_lshlrev_b32 v{BV}, 12, v{T+1}\n  v_lshl_add_u32 v{BV}, v{T}, 4, v{BV}')
    a(f'  s_lshl_b32 s45, s3, 6\n  s_add_u32 s45, s45, {LW}\n  v_lshl_add_u32 v{BW}, v{T+1}, 4, s45')
    a(f'  v_lshlrev_b32 v{EA}, 5, v{T}\n  v_and_b32 v{T+2}, 1, v{T+1}\n  v_lshl_add_u32 v{EA}, v{T+2}, 4, v{EA}')
    a(f'  v_lshrrev_b32 v{T+2}, 5, v0\n  s_lshl_b32 s45, s3, 1\n  v_add_lshl_u32 v{T+2}, v{T+2}, s45, 9\n  v_add_u32 v{EA}, v{EA}, v{T+2}\n  v_add_u32 v{EA}, {LRED}, v{EA}')
    a(f'  s_lshl_b32 s45, s3, 2\n  v_add_lshl_u32 v{EB}, v{T+1}, s45, 2\n  v_add_u32 v{EB}, {LDEN}, v{EB}')
    a(f'  s_mov_b32 s50, {A7+1024}\n  s_mov_b32 s51, -1\n  s_mov_b32 s52, 0')
    for j in range(4): a(f'  v_add_u32 v{AD+j}, {A7}, v{BK+j}')
    a('  s_waitcnt vmcnt(0) lgkmcnt(0)\n  s_barrier')
    for j in range(4): a(f'  ds_read_b128 a[{OM+j*4}:{OM+j*4+3}], v{AD+j}')
    for j in range(4): a(f'  v_add_u32 v{AD+j}, s50, v{BK+j}')
    a('  s_waitcnt lgkmcnt(0)')
    a('  s_branch L_K1')
    a('L_slow:')
    a('  s_call_b64 s[66:67], L_init')
    a('  s_mov_b32 s45, 0x100000')
    a('L_sp:\n  s_waitcnt lgkmcnt(0)\n  s_mov_b64 s[62:63], 0\n  s_atomic_add_x2 s[62:63], s[78:79], 8 glc\n  s_waitcnt lgkmcnt(0)')
    a('  s_cmp_eq_u32 s63, 1\n  s_cbranch_scc1 L_rdy\n  s_sub_u32 s45, s45, 1\n  s_cbranch_scc0 L_sp\n  s_branch L_rdy')
    a('L_init:')
    a('  s_mov_b32 s45, 1\n  s_atomic_add s45, s[78:79], 0 glc\n  s_waitcnt lgkmcnt(0)')
    a('  s_cmp_eq_u32 s45, 0\n  s_cbranch_scc0 L_iret')
    a(f'  s_mov_b32 s45, 1\n  s_atomic_add s45, s[24:25], {hex(NONCE)} glc')
    a(f'  s_movk_i32 s48, {CTRSTRIDE}\n  v_mul_lo_u32 v{KS+2}, v0, s48\n  v_mov_b32 v{KS}, 0\n  v_mov_b32 v{KS+1}, 0\n  s_mov_b32 s48, {CTR}')
    a(f'  s_mov_b32 exec_hi, 0\n  buffer_store_dwordx2 v[{KS}:{KS+1}], v{KS+2}, s[24:27], s48 offen sc1\n  s_mov_b32 exec_hi, -1')
    a('  s_waitcnt vmcnt(0) lgkmcnt(0)')
    a('  s_add_u32 s48, s45, 1\n  s_mov_b32 s49, 1\n  s_atomic_swap_x2 s[48:49], s[78:79], 8')
    a('L_iret:')
    a('  s_setpc_b64 s[66:67]')
    if amp:
        a('L_amp:\n  s_waitcnt vmcnt(0)\n  s_memrealtime s[34:35]\n  s_waitcnt lgkmcnt(0)\n  s_sub_u32 s34, s34, s70')
        a(f'  s_max_u32 s34, s34, 6800\n  s_min_u32 s34, s34, 9000\n  s_sub_u32 s35, s34, 6800\n  s_mul_i32 s35, s35, {amp}\n  s_add_u32 s35, s35, s34')
        a('L_amp1:\n  s_memrealtime s[32:33]\n  s_waitcnt lgkmcnt(0)\n  s_sub_u32 s32, s32, s70\n  s_cmp_lt_u32 s32, s35\n  s_cbranch_scc1 L_amp1\n  s_endpgm')
    if stamps:
        a('L_stamp0:')
        if tail: a('  s_memtime s[96:97]')
        a('  s_waitcnt vmcnt(0)\n  s_memrealtime s[34:35]\n  s_mov_b64 s[32:33], 0')
        if tail or head:
            a('  s_memtime s[98:99]\n  s_waitcnt lgkmcnt(0)' if tail else '  s_waitcnt lgkmcnt(0)')
            for i in range(5): a(f'  s_sub_u32 s{90+2*i}, s{90+2*i}, s4\n  v_mov_b32 v{KR+i}, s{90+2*i}')
            a(f'  s_lshl_b32 s47, s39, 5\n  s_add_u32 s47, s47, 0xa0000\n  v_mov_b32 v{T}, 0')
            a(f'  buffer_store_dwordx4 v[{KR}:{KR+3}], v{T}, s[24:27], s47 offen\n  buffer_store_dword v{KR+4}, v{T}, s[24:27], s47 offen offset:16')
        a('L_stamp:\n  s_getreg_b32 s46, hwreg(HW_REG_XCC_ID)\n  s_sub_u32 s49, 0xfffff, s49\n  s_waitcnt lgkmcnt(0)')
        a(f'  v_mov_b32 v{KS}, s70\n  v_mov_b32 v{KS+1}, s71\n  v_mov_b32 v{KS+2}, s6\n  v_mov_b32 v{KS+3}, s7')
        a(f'  v_mov_b32 v{KS+4}, s32\n  v_mov_b32 v{KS+5}, s33\n  v_mov_b32 v{KS+6}, s46\n  v_mov_b32 v{KS+7}, s60')
        a(f'  v_mov_b32 v{KS+8}, s34\n  v_mov_b32 v{KS+9}, s35\n  v_mov_b32 v{KS+10}, s49\n  v_mov_b32 v{KS+11}, 0')
        a(f'  v_mov_b32 v{KS+12}, s68\n  v_mov_b32 v{KS+13}, s69')
        if trace:
            a(f'  s_lshl_b32 s47, s2, 10\n  s_add_u32 s47, s47, 0xc0000')
            for i in range(3): a(f'  buffer_store_dword v{96+i}, v{AD}, s[24:27], s47 offen offset:{256*i}')
        a(f'  s_lshl_b32 s47, s2, 6\n  s_add_u32 s47, s47, 0x80000\n  v_mov_b32 v{T}, 0\n  s_mov_b64 exec, 1')
        for i in range(4): a(f'  buffer_store_dwordx4 v[{KS+4*i}:{KS+4*i+3}], v{T}, s[24:27], s47 offen offset:{16*i}')
        a('  s_endpgm')
    a(f'''.section .rodata,"a"
.p2align 6
.amdhsa_kernel {NAME}
  .amdhsa_next_free_vgpr {acc_off+na}
  .amdhsa_next_free_sgpr {100 if (trace or tail or head) else 88}
  .amdhsa_accum_offset {acc_off}
  .amdhsa_group_segment_fixed_size 0
  .amdhsa_kernarg_size 56
  .amdhsa_user_sgpr_count 2
  .amdhsa_user_sgpr_kernarg_segment_ptr 1
  .amdhsa_system_sgpr_workgroup_id_x 1
  .amdhsa_float_denorm_mode_32 3
.end_amdhsa_kernel
''')
    return '\n'.join(o)
if __name__=='__main__':
    import json
    kw = json.loads(sys.argv[1]) if len(sys.argv)>1 else {}
    print(gen(**kw))
```
